```python
import torch

def _softmax(x, axis=-1):
    return torch.softmax(x, dim=axis)
def _gelu(x):
    return torch.nn.functional.gelu(x, approximate="tanh")
def _silu(x):
    return torch.nn.functional.silu(x)
def _sigmoid(x):
    return torch.sigmoid(x)
def _layernorm(x, axis=-1, eps=1e-5):
    m = x.mean(dim=axis, keepdim=True)
    v = x.var(dim=axis, keepdim=True, unbiased=False)
    return (x - m) / torch.sqrt(v + eps)
def _scatter_add(tgt, idx, src, axis=0):
    return tgt.clone().index_add_(axis, idx, src)
def _segment_sum(src, seg, n):
    out = torch.zeros((n,) + src.shape[1:], dtype=src.dtype)
    return out.index_add_(0, seg, src)
def _pad(x, pw):
    flat = tuple(v for pair in reversed(pw) for v in pair)
    return torch.nn.functional.pad(x, flat)

kernel_name = 'gated_mix__linear_kernel_hedgehog__dense_activation_relu__prompt'

def setup_inputs():

    _w = (lambda a: (lambda t: t.to(torch.bfloat16) if t.is_floating_point() else t)(torch.as_tensor(a)))
    def _A_setup():
        B, S, D, H = 1, 2048, 512, 32
        Dh = D // H
        return {
            "x": _w((lambda *s: torch.randn(*s, dtype=torch.bfloat16) * 0.05)(B, S, D)),
            "wqkv": _w((lambda *s: torch.randn(*s, dtype=torch.bfloat16) * 0.8)(D, 3 * D)),
            "w_phi": _w((lambda *s: torch.randn(*s, dtype=torch.bfloat16) * 0.8)(H, Dh, Dh) * (Dh ** -0.5)),
            "wo": _w((lambda *s: torch.randn(*s, dtype=torch.bfloat16) * 0.2)(D, D)),
        }
    _A_in = _A_setup()

    def _B_setup():
        B, S, D, Dff = 1, 2048, 512, 1792
        return {
            "x": _w((lambda *s: torch.randn(*s, dtype=torch.bfloat16) * 0.05)(B, S, D)),
            "w1": _w((lambda *s: torch.randn(*s, dtype=torch.bfloat16) * 0.05)(D, Dff)),
            "w2": _w((lambda *s: torch.randn(*s, dtype=torch.bfloat16) * 0.05)(Dff, D)),
        }
    _B_in = _B_setup()

    return {
        "A_x": _A_in["x"],
        "A_wqkv": _A_in["wqkv"],
        "A_w_phi": _A_in["w_phi"],
        "A_wo": _A_in["wo"],
        "B_x": _B_in["x"],
        "B_w1": _B_in["w1"],
        "B_w2": _B_in["w2"],
        "gate_w": _w((lambda *s: torch.randn(*s, dtype=torch.bfloat16) * 0.05)(512) * 16.0),
    }

def reference(A_x, A_wqkv, A_w_phi, A_wo, B_x, B_w1, B_w2, gate_w):
    def _A_ref(x, wqkv, w_phi, wo):
        B, S, D = x.shape
        H = 32; Dh = D // H
        qkv = (lambda x, *d: x.permute(*d))((x @ wqkv).reshape(B, S, 3, H, Dh), 2, 0, 3, 1, 4)
        q, k, v = qkv[0], qkv[1], qkv[2]
        pq = torch.einsum("bhsd,hdf->bhsf", q, w_phi)
        pk = torch.einsum("bhsd,hdf->bhsf", k, w_phi)
        phi_q = torch.concatenate([_softmax(pq, axis=-1), _softmax(-pq, axis=-1)], axis=-1)
        phi_k = torch.concatenate([_softmax(pk, axis=-1), _softmax(-pk, axis=-1)], axis=-1)
        kv = torch.einsum("bhsf,bhsd->bhfd", phi_k, v)
        z  = torch.einsum("bhsf->bhf", phi_k)
        num = torch.einsum("bhqf,bhfd->bhqd", phi_q, kv)
        den = torch.einsum("bhqf,bhf->bhq", phi_q, z)[..., None] + 1e-6
        o = num / den
        return (lambda x, *d: x.permute(*d))(o, 0, 2, 1, 3).reshape(B, S, D) @ wo

    def _B_ref(x, w1, w2):
        h = torch.einsum("bsd,df->bsf", x, w1)
        zero = torch.zeros_like(h)
        h = torch.maximum(h, zero)
        return torch.einsum("bsf,fd->bsd", h, w2)

    x = A_x
    g = _sigmoid((x * gate_w).sum(-1, keepdims=True))
    a = _A_ref(x, A_wqkv, A_w_phi, A_wo)
    b = _B_ref(x, B_w1, B_w2)
    return g * a + (1 - g) * b
```

```python
import re

TRANS = ("v_exp_f32", "v_log_f32", "v_rcp_f32", "v_rsq_f32", "v_sqrt_f32", "v_sin_f32", "v_cos_f32", "v_rcp_iflag_f32")
REG_RE = re.compile(r"^(-)?(abs\()?([vsa])(?:(\d+)|\[(\d+):(\d+)\])\)?$")

def regs_of(tok):
    tok = tok.strip()
    if tok in ("vcc",): return [("s", 106), ("s", 107)]
    if tok == "vcc_lo": return [("s", 106)]
    if tok == "vcc_hi": return [("s", 107)]
    if tok == "exec": return [("s", 126), ("s", 127)]
    if tok == "m0": return [("s", 124)]
    m = REG_RE.match(tok)
    if not m: return []
    k = m.group(3)
    if m.group(4) is not None: return [(k, int(m.group(4)))]
    return [(k, i) for i in range(int(m.group(5)), int(m.group(6)) + 1)]

def split_ops(s):
    out, depth, cur = [], 0, ""
    for ch in s:
        if ch in "[(": depth += 1
        if ch in "])": depth -= 1
        if ch == "," and depth == 0: out.append(cur.strip()); cur = ""
        else: cur += ch
    if cur.strip(): out.append(cur.strip())
    return out

class Ins:
    def __init__(self, text):
        self.text = text
        t = text.split(";")[0].strip()
        self.label = t.endswith(":")
        self.directive = t.startswith(".")
        self.mn = "" if (self.label or self.directive or not t) else t.split()[0]
        rest = t[len(self.mn):].strip() if self.mn else ""
        ops = split_ops(rest)
        self.mods = ""
        if ops:
            parts = ops[-1].split(None, 1)
            if len(parts) == 2 and not parts[0].endswith("("):
                ops[-1] = parts[0]; self.mods = parts[1]
        self.ops = ops
        mn = self.mn
        self.kind = None; self.w = set(); self.r = set(); self.srcc = set(); self.ab = set(); self.sdata = set()
        self.passes = 0
        if not mn: return
        R = lambda i: set(regs_of(ops[i])) if i < len(ops) else set()
        allr = lambda a: set().union(*[R(i) for i in range(a, len(ops))]) if a < len(ops) else set()
        if mn.startswith("v_mfma"):
            self.kind = "mfma"; self.passes = 8 if "32x32" in mn else 4
            self.w = R(0); self.ab = R(1) | R(2); self.srcc = R(3); self.r = self.ab | self.srcc
        elif mn.startswith("v_"):
            self.kind = "valu"
            if mn.startswith("v_cmp"):
                self.w = R(0); self.r = allr(1)
            elif mn.startswith("v_permlane") and "swap" in mn:
                self.w = R(0) | R(1); self.r = R(0) | R(1)
            elif mn.startswith(("v_add_co", "v_sub_co", "v_addc_co", "v_subb_co")):
                self.w = R(0) | R(1); self.r = allr(2)
            else:
                self.w = R(0); self.r = allr(1)
                if mn.startswith(("v_fmac", "v_pk_fmac", "v_dot2c", "v_writelane")): self.r |= R(0)
                if mn.startswith("v_cndmask") and len(ops) == 3: self.r |= set(regs_of("vcc"))
            self.dpp = ("quad_perm" in self.mods or "row_" in self.mods or "wave_" in self.mods)
        elif mn.startswith(("buffer_", "global_")):
            self.kind = "vmem"
            islds = " lds" in (" " + self.mods)
            if mn.startswith("buffer_load"):
                if islds: self.r = allr(0) | set(regs_of("m0")); self.ldsdma = True
                else:
                    self.w = R(0); self.r = allr(1)
                    if "d16" in mn: self.r |= R(0)
            elif mn.startswith("buffer_store"):
                self.r = allr(0)
                if "x4" in mn or "x3" in mn: self.sdata = R(0)
            elif mn.startswith("buffer_atomic"):
                self.r = allr(0)
                if "sc0" in self.mods: self.w = R(0)
            elif mn.startswith("global_load"):
                self.w = R(0); self.r = allr(1)
            elif mn.startswith("global_store"):
                self.r = allr(0)
                if "x4" in mn or "x3" in mn: self.sdata = R(1)
            elif mn.startswith("global_atomic"):
                if "sc0" in self.mods: self.w = R(0); self.r = allr(1)
                else: self.r = allr(0)
            else:
                pass
        elif mn.startswith("ds_"):
            self.kind = "ds"
            if mn.startswith("ds_read") or "_rtn" in mn or "permute" in mn or "swizzle" in mn:
                self.w = R(0); self.r = allr(1)
            else:
                self.r = allr(0)
        elif mn.startswith("s_"):
            self.kind = "salu"
            if mn.startswith(("s_load", "s_buffer_load", "s_memtime", "s_memrealtime")):
                self.kind = "smem"; self.w = R(0); self.r = allr(1)
            elif mn.startswith(("s_cmp", "s_waitcnt", "s_barrier", "s_nop", "s_branch", "s_cbranch", "s_endpgm", "s_sleep", "s_setprio", "s_bitcmp")):
                self.r = allr(0)
            else:
                self.w = R(0); self.r = allr(1)
                if "saveexec" in mn: self.w |= set(regs_of("exec"))
        else:
            raise ValueError("unknown instruction " + text)
    def states(self):
        if self.mn == "s_nop": return int(self.ops[0], 0) + 1
        return 1 if self.mn else 0

def need(p, c):
    n = 0
    V = lambda s: {x for x in s if x[0] in "va"}
    S = lambda s: {x for x in s if x[0] == "s"}
    if p.kind == "valu":
        pv = V(p.w); ps = S(p.w)
        if c.kind == "mfma" and pv & c.r: n = max(n, 2)
        if p.mn.startswith(TRANS) and c.kind == "valu" and not c.mn.startswith(TRANS) and pv & c.r: n = max(n, 1)
        if p.mn.startswith(TRANS) and c.kind in ("vmem", "ds") and pv & c.r: n = max(n, 1)
        if ps & c.r:
            if c.kind == "vmem": n = max(n, 5)
            if c.kind == "valu": n = max(n, 4 if c.mn.startswith(("v_readlane", "v_writelane")) else 2)
            if c.kind == "mfma": n = max(n, 4)
            if c.kind in ("salu", "smem"): n = max(n, 1)
        if c.kind == "valu" and pv & c.r:
            if c.mn.startswith(("v_readlane", "v_readfirstlane")): n = max(n, 1)
            if c.mn.startswith("v_permlane"): n = max(n, 2)
            if getattr(c, "dpp", False): n = max(n, 2)
        if "op_sel" in p.mods and c.kind == "valu" and pv & (c.r | c.w): n = max(n, 1)
    if p.kind == "mfma":
        big = p.passes == 8
        if c.kind == "mfma":
            if p.w & c.ab: n = max(n, 12 if big else 8)
            if p.w & c.srcc and not (p.w == c.srcc and p.passes == c.passes): n = max(n, 10 if big else 6)
            if p.w & c.w and not (p.w == c.srcc and p.passes == c.passes): n = max(n, 10 if big else 6)
        elif c.kind == "valu":
            if p.w & (c.r | c.w): n = max(n, 12 if big else 8)
            if p.srcc & c.w: n = max(n, 7 if big else 3)
        elif c.kind in ("vmem", "ds"):
            if p.w & (c.r | c.w): n = max(n, 12 if big else 8)
            if p.srcc & c.w: n = max(n, 7 if big else 3)
    if p.kind == "salu" and ("s", 124) in p.w and getattr(c, "ldsdma", False): n = max(n, 1)
    if p.sdata and p.sdata & c.w: n = max(n, 2 if c.kind in ("valu", "mfma") else 1)
    return n

class Asm:
    def __init__(self): self.L = []
    def __call__(self, text):
        for line in text.split("\n"):
            line = line.strip()
            if line: self.L.append(line)
    def raw(self, text): self.L.append(text)
    def finalize(self):
        out = []; hist = []
        nins = 0
        for line in self.L:
            ins = Ins(line)
            if ins.label or ins.directive or not ins.mn:
                out.append(line); continue
            req = 0; dist = 0
            for p in reversed(hist[-24:]):
                nd = need(p, ins)
                if nd > dist: req = max(req, nd - dist)
                dist += p.states()
                if dist >= 20: break
            while req > 0:
                k = min(req, 16)
                nop = Ins(f"s_nop {k-1}"); out.append(f"    s_nop {k-1}"); hist.append(nop); req -= k; nins += 1
            out.append("    " + line); hist.append(ins)
        self.nops = nins
        return "\n".join(out) + "\n"
```

```python
import sys
from asmlib import Asm

NAME = "gated_mix__linear_kernel_hedgehog__dense_activation_relu__prompt"
WS_AF = 0
AF_MP = 144 * 2048
WS_QF = 0xA00000
WS_KV = 0xC00000
KV_P = 2176; KV_H = 16 * KV_P
WS_G = 0xE00000
WS_SIZE = 0x1000000
LOG2E = 0x3fb8aa3b

class Cnt:
    def __init__(self, a, name, maxv): self.a, self.name, self.maxv, self.q = a, name, maxv, []
    def issue(self, tag): self.q.append(tag)
    def n_after(self, tag):
        idx = max(i for i, t in enumerate(self.q) if t == tag)
        return len(self.q) - 1 - idx
    def val(self, tag):
        if tag not in self.q: return None
        n = self.n_after(tag)
        self.q = self.q[len(self.q) - n:] if n else []
        return min(n, self.maxv)
    def wait(self, tag):
        v = self.val(tag)
        if v is not None: self.a(f"s_waitcnt {self.name}({v})")
    def drain(self): self.q = []

def vr(b, n): return f"v[{b}:{b+n-1}]"

def srd(a, d, lo, nbytes):
    a(f"s_mov_b32 s{d}, s{lo}"); a(f"s_mov_b32 s{d+1}, s{lo+1}"); a(f"s_mov_b32 s{d+2}, {nbytes}"); a(f"s_mov_b32 s{d+3}, 0x00020000")

def softmax16(a, P, T, sL, out):
    a(f"v_max3_f32 v{T}, v{P}, v{P+1}, v{P+2}")
    a(f"v_max3_f32 v{T+1}, v{P+3}, v{P+4}, v{P+5}")
    a(f"v_max3_f32 v{T}, v{T}, v{P+6}, v{P+7}")
    a(f"v_max3_f32 v{T+1}, v{T+1}, v{P+8}, v{P+9}")
    a(f"v_max3_f32 v{T}, v{T}, v{P+10}, v{P+11}")
    a(f"v_max3_f32 v{T+1}, v{T+1}, v{P+12}, v{P+13}")
    a(f"v_max3_f32 v{T}, v{T}, v{P+14}, v{P+15}")
    a(f"v_max_f32 v{T}, v{T}, v{T+1}")
    a(f"v_mul_f32 v{T}, s{sL}, v{T}")
    for i in range(16): a(f"v_fma_f32 v{P+i}, v{P+i}, s{sL}, -v{T}")
    for i in range(16): a(f"v_exp_f32 v{P+i}, v{P+i}")
    a(f"v_add_f32 v{T}, v{P}, v{P+1}")
    a(f"v_add_f32 v{T+1}, v{P+2}, v{P+3}")
    for i in range(4, 16, 2):
        a(f"v_add_f32 v{T}, v{T}, v{P+i}")
        a(f"v_add_f32 v{T+1}, v{T+1}, v{P+i+1}")
    a(f"v_add_f32 v{T}, v{T}, v{T+1}")
    a(f"v_rcp_f32 v{T}, v{T}")
    for i in range(16): a(f"v_mul_f32 v{P+i}, v{P+i}, v{T}")
    for i in range(8): a(f"v_cvt_pk_bf16_f32 v{out+i}, v{P+2*i}, v{P+2*i+1}")

def aphi_addr(a, vdst, vlane, t0, t1):
    a(f"v_lshrrev_b32 v{t0}, 5, v{vlane}")
    a(f"v_lshlrev_b32 v{t0}, 7, v{t0}")
    a(f"v_bfe_u32 v{t1}, v{vlane}, 3, 2")
    a(f"v_lshl_add_u32 v{t0}, v{t1}, 3, v{t0}")
    a(f"v_and_b32 v{t1}, 3, v{vlane}")
    a(f"v_lshl_add_u32 v{vdst}, v{t1}, 1, v{t0}")

def aphi_load(a, vm, tmp, vaddr, sSRD, soff, tag, extra=0):
    for j in range(8):
        d = j if j < 4 else j + 4
        a(f"buffer_load_ushort v{tmp + j}, v{vaddr}, s[{sSRD}:{sSRD+3}], {soff} offen offset:{d*32 + extra}")
        vm.issue(tag)

def aphi_pack(a, dst, tmp, n, vsign):
    a(f"v_bfe_u32 v{vsign}, v0, 2, 1"); a(f"v_mul_u32_u24 v{vsign}, 0x8000, v{vsign}"); a(f"v_lshl_or_b32 v{vsign}, v{vsign}, 16, v{vsign}")
    for i in range(n): a(f"v_lshl_or_b32 v{dst+i}, v{tmp+2*i+1}, 16, v{tmp+2*i}")
    for i in range(n): a(f"v_xor_b32 v{dst+i}, v{dst+i}, v{vsign}")

def header(a, name):
    a(f".globl {name}"); a(".p2align 8"); a(f".type {name},@function"); a(f"{name}:")

def descriptor(name, nv, ns):
    nv = (nv + 7) // 8 * 8
    return f""".p2align 6
.amdhsa_kernel {name}
  .amdhsa_next_free_vgpr {nv}
  .amdhsa_next_free_sgpr {ns}
  .amdhsa_accum_offset {nv}
  .amdhsa_group_segment_fixed_size 0
  .amdhsa_kernarg_size 88
  .amdhsa_user_sgpr_count 2
  .amdhsa_user_sgpr_kernarg_segment_ptr 1
  .amdhsa_system_sgpr_workgroup_id_x 1
.end_amdhsa_kernel
"""

def gen_k1(a, opt):
    name = "k1_kernel"
    header(a, name)
    sX, sW, sWS, sP = 28, 32, 36, 40
    s_w, s_rb, s_t, s_w1k = 44, 45, 46, 47
    sXo = [48, 49]; sWo = [50, 51, 52, 53]; sT = [54, 55, 56, 57]; sL = 58
    a("s_cmp_ge_u32 s2, 256"); a("s_cbranch_scc1 K1_END")
    a("s_load_dwordx16 s[4:19], s[0:1], 0")
    a("s_load_dwordx2 s[24:25], s[0:1], 80")
    a("v_lshrrev_b32 v1, 6, v0"); a("v_and_b32 v0, 63, v0")
    a(f"v_readfirstlane_b32 s{s_w}, v1")
    a("s_and_b32 s20, s2, 7"); a("s_lshr_b32 s21, s2, 3")
    if opt.get("map1", "A") == "A":
        a(f"s_lshl_b32 s{s_rb}, s20, 1"); a("s_lshr_b32 s22, s21, 4"); a(f"s_add_u32 s{s_rb}, s{s_rb}, s22")
        a(f"s_and_b32 s{s_t}, s21, 15")
    else:
        a("s_lshr_b32 s22, s20, 1"); a(f"s_lshl_b32 s{s_rb}, s22, 2"); a("s_lshr_b32 s22, s21, 3"); a(f"s_add_u32 s{s_rb}, s{s_rb}, s22")
        a("s_and_b32 s22, s20, 1"); a("s_lshl_b32 s22, s22, 3"); a(f"s_and_b32 s{s_t}, s21, 7"); a(f"s_add_u32 s{s_t}, s{s_t}, s22")
    a(f"s_lshl_b32 s{s_w1k}, s{s_w}, 10")
    a(f"s_mov_b32 s{sL}, {LOG2E}")
    vXs, vWs = 2, 3
    a("v_lshrrev_b32 v4, 3, v0")
    a("v_lshrrev_b32 v5, 4, v0")
    a(f"s_and_b32 s22, s{s_w}, 1"); a("s_lshl_b32 s23, s22, 2")
    a("v_add_u32 v5, s23, v5")
    a("v_and_b32 v6, 7, v0")
    a("v_xor_b32 v5, v5, v6")
    a("v_lshlrev_b32 v5, 4, v5")
    a(f"v_lshl_add_u32 v{vXs}, v4, 10, v5")
    a(f"s_lshl_b32 s{sXo[0]}, s{s_rb}, 17"); a(f"s_lshl_b32 s23, s{s_w}, 13"); a(f"s_add_u32 s{sXo[0]}, s{sXo[0]}, s23")
    a(f"s_add_u32 s{sXo[1]}, s{sXo[0]}, 65536")
    vm_, vhf, vr_, vlo = 8, 9, 10, 11
    a(f"v_and_b32 v{vm_}, 31, v0"); a(f"v_lshrrev_b32 v{vhf}, 5, v0"); a(f"v_bfe_u32 v{vr_}, v0, 2, 2")
    a("v_bfe_u32 v4, v0, 4, 1"); a("v_and_b32 v5, 3, v0"); a("v_lshlrev_b32 v5, 3, v5"); a(f"v_lshl_add_u32 v{vlo}, v4, 5, v5")
    vL16 = 12
    a(f"v_lshlrev_b32 v{vL16}, 4, v0")
    a("s_waitcnt lgkmcnt(0)")
    srd(a, sX, 4, 2048 * 1024); srd(a, sWS, 24, WS_SIZE)
    a(f"s_cmp_lt_u32 s{s_t}, 8"); a("s_cbranch_scc1 K1_QKV")
    a(f"s_cmp_eq_u32 s{s_t}, 15"); a("s_cbranch_scc1 K1_AUX")

    XB, WB = 0, 49152
    vXa = [16, 17, 18, 19]
    def xa_setup(rowbase_sgpr):
        a(f"v_bfe_u32 v4, v{vm_}, 1, 3")
        a(f"v_lshlrev_b32 v5, 7, v{vm_}")
        a(f"v_add_u32 v5, s{rowbase_sgpr}, v5")
        for kk in range(4):
            a(f"v_add_u32 v6, {2*kk}, v{vhf}")
            a("v_xor_b32 v6, v6, v4")
            a(f"v_lshl_add_u32 v{vXa[kk]}, v6, 4, v5")

    def gemm(kind):
        vm = Cnt(a, "vmcnt", 63); lg = Cnt(a, "lgkmcnt", 15)
        H = kind == "H"
        WST = 32768 if H else 24576
        nW = 4 if H else 3
        wstep = 64 * 3584 if H else 64 * 3072
        if not H:
            aphi_addr(a, 4, 0, 5, 6)
            aphi_load(a, vm, 144, 4, sP, f"s{sT[0]}", "phi")
            aphi_load(a, vm, 152, 4, sP, f"s{sT[0]}", "phi", extra=512)
        def dma(s):
            buf = s % 3
            for i in range(2):
                a(f"s_add_u32 m0, s{s_w1k}, {XB + buf*16384 + i*8192}")
                a(f"buffer_load_dwordx4 v{vXs}, s[{sX}:{sX+3}], s{sXo[i]} offen lds"); vm.issue(("st", s))
                if s < 7: a(f"s_add_u32 s{sXo[i]}, s{sXo[i]}, 128")
            for i in range(nW):
                a(f"s_add_u32 m0, s{s_w1k}, {WB + buf*WST + i*8192}")
                a(f"buffer_load_dwordx4 v{vWs}, s[{sW}:{sW+3}], s{sWo[i]} offen lds"); vm.issue(("st", s))
                if s < 7: a(f"s_add_u32 s{sWo[i]}, s{sWo[i]}, {wstep}")
        F = [32, 48]
        ACC = 64
        def reads(t):
            s, kk = t >> 2, t & 3; buf = s % 3; f = F[t & 1]
            if H:
                for i in range(2):
                    a(f"ds_read_b128 {vr(f+4*i,4)}, v{vXa[kk]} offset:{XB + buf*16384 + i*4096}"); lg.issue(("f", t))
                for i in range(2):
                    base = (22 if buf == 2 else 20) + i
                    for sec in range(2):
                        off = (0 if buf == 2 else buf*WST) + kk*8192 + sec*2048
                        a(f"ds_read_b64_tr_b16 {vr(f+8+4*i+2*sec,2)}, v{base} offset:{off}"); lg.issue(("f", t))
            else:
                a(f"ds_read_b128 {vr(f,4)}, v{vXa[kk]} offset:{XB + buf*16384}"); lg.issue(("f", t))
                base = 21 if buf == 2 else 20
                for sg in range(3):
                    for sec in range(2):
                        off = (0 if buf == 2 else buf*WST) + sg*8192 + kk*2048 + sec*512
                        a(f"ds_read_b64_tr_b16 {vr(f+4+4*sg+2*sec,2)}, v{base} offset:{off}"); lg.issue(("f", t))
        def mfmas(t):
            f = F[t & 1]
            if H:
                for i_n in range(2):
                    for i_m in range(2):
                        d = ACC + (2*i_n + i_m)*16
                        c = "0" if t == 0 else vr(d, 16)
                        a(f"v_mfma_f32_32x32x16_bf16 {vr(d,16)}, {vr(f+8+4*i_n,4)}, {vr(f+4*i_m,4)}, {c}")
            else:
                for sg in range(3):
                    d = ACC + sg*16
                    c = "0" if t == 0 else vr(d, 16)
                    if sg < 2: a(f"v_mfma_f32_32x32x16_bf16 {vr(d,16)}, {vr(f+4+4*sg,4)}, {vr(f,4)}, {c}")
                    else:      a(f"v_mfma_f32_32x32x16_bf16 {vr(d,16)}, {vr(f,4)}, {vr(f+4+4*sg,4)}, {c}")
        dma(0); dma(1); dma(2)
        vm.wait(("st", 0)); a("s_barrier")
        reads(0)
        for t in range(32):
            s = t >> 2
            if (t & 3) == 3 and t < 31:
                v = vm.val(("st", s+1)); lg.drain()
                a(f"s_waitcnt vmcnt({v}) lgkmcnt(0)")
                a("s_barrier")
                reads(t+1)
                if s + 3 < 8: dma(s+3)
                mfmas(t)
            else:
                if t < 31: reads(t+1)
                lg.wait(("f", t))
                mfmas(t)
        return vm, lg

    srd(a, sW, 14, 512 * 3584)
    a("v_lshrrev_b32 v4, 5, v0")
    a("s_lshl_b32 s23, s22, 1")
    a("v_add_u32 v5, s23, v4")
    a("v_bfe_u32 v6, v0, 2, 3")
    a("v_xor_b32 v5, v5, v6")
    a("v_and_b32 v6, 3, v0"); a("v_lshlrev_b32 v6, 4, v6")
    a("v_lshl_add_u32 v5, v5, 6, v6")
    a("v_mul_u32_u24 v4, 3584, v4")
    a(f"v_add_u32 v{vWs}, v4, v5")
    a(f"s_sub_u32 s{s_t}, s{s_t}, 8")
    a(f"s_lshl_b32 s{sWo[0]}, s{s_t}, 9"); a(f"s_mul_i32 s23, s{s_w}, {2*3584}"); a(f"s_add_u32 s{sWo[0]}, s{sWo[0]}, s23")
    for i in range(1, 4): a(f"s_add_u32 s{sWo[i]}, s{sWo[0]}, {i*16*3584}")
    a("s_lshl_b32 s23, s22, 13")
    xa_setup(23)
    a(f"s_lshr_b32 s{sT[1]}, s{s_w}, 1")
    a(f"v_lshl_add_u32 v4, v{vhf}, 3, v{vr_}")
    a("v_lshlrev_b32 v4, 9, v4")
    a(f"v_add_u32 v4, v4, v{vlo}")
    a(f"v_add_u32 v4, {WB}, v4")
    a(f"s_lshl_b32 s23, s{sT[1]}, 1")
    for i in range(2):
        if i: a("s_add_u32 s23, s23, 1")
        a(f"v_xor_b32 v5, s23, v{vr_}")
        a(f"v_lshl_add_u32 v{20+i}, v5, 6, v4")
        a(f"v_add_u32 v{22+i}, 65536, v{20+i}")
    a(f"s_lshl_b32 s23, s{s_rb}, 1"); a("s_add_u32 s23, s23, s22"); a(f"s_mul_i32 s{sT[2]}, s23, {AF_MP}")
    a(f"s_lshl_b32 s23, s{s_t}, 15"); a(f"s_add_u32 s{sT[2]}, s{sT[2]}, s23")
    a(f"s_lshl_b32 s23, s{sT[1]}, 13"); a(f"s_add_u32 s{sT[2]}, s{sT[2]}, s23")
    a(f"s_add_u32 s{sT[3]}, s{sT[2]}, 4096")
    gemm("H")
    ACC = 64
    for i_n in range(2):
        for i_m in range(2):
            d = ACC + (2*i_n + i_m)*16
            o = 32 + (2*i_n + i_m)*8 if False else 128 + (2*i_n+i_m)*8
            for i in range(8): a(f"v_cvt_pk_bf16_f32 v{o+i}, v{d+2*i}, v{d+2*i+1}")
            for i in range(8): a(f"v_pk_max_i16 v{o+i}, v{o+i}, 0")
            for half in range(2):
                a(f"buffer_store_dwordx4 {vr(o+4*half,4)}, v{vL16}, s[{sWS}:{sWS+3}], s{sT[2+i_n]} offen offset:{half*2048 + i_m*1024} {opt.get('st1','')}")
    a("s_endpgm")

    a("K1_QKV:")
    srd(a, sW, 6, 512 * 3072); srd(a, sP, 8, 32 * 512)
    a("v_lshrrev_b32 v4, 3, v0")
    a("v_bfe_u32 v5, v0, 4, 1"); a("v_lshlrev_b32 v5, 2, v5")
    a("v_and_b32 v6, 7, v0"); a("v_xor_b32 v5, v5, v6"); a("v_lshlrev_b32 v5, 4, v5")
    a("v_mul_u32_u24 v4, 3072, v4")
    a(f"v_add_u32 v{vWs}, v4, v5")
    a(f"s_lshl_b32 s{sWo[0]}, s{s_t}, 7"); a(f"s_mul_i32 s23, s{s_w}, {8*3072}"); a(f"s_add_u32 s{sWo[0]}, s{sWo[0]}, s23")
    for i in range(1, 3): a(f"s_add_u32 s{sWo[i]}, s{sWo[0]}, {i*1024}")
    s_mt, s_p = 59, 60
    a(f"s_and_b32 s{s_mt}, s{s_w}, 3"); a(f"s_lshr_b32 s{s_p}, s{s_w}, 2")
    a(f"s_lshl_b32 s23, s{s_mt}, 12")
    xa_setup(23)
    a(f"v_lshl_add_u32 v4, v{vhf}, 3, v{vr_}"); a("v_lshlrev_b32 v4, 7, v4"); a(f"v_add_u32 v4, v4, v{vlo}"); a(f"v_add_u32 v4, {WB}, v4")
    a(f"v_lshrrev_b32 v5, 1, v{vr_}"); a(f"v_xor_b32 v5, s{s_p}, v5")
    a("v_lshl_add_u32 v20, v5, 6, v4"); a("v_add_u32 v21, 49152, v20")
    a(f"s_lshl_b32 s{sT[1]}, s{s_t}, 2"); a(f"s_lshl_b32 s23, s{s_p}, 1"); a(f"s_add_u32 s{sT[1]}, s{sT[1]}, s23")
    a(f"s_lshl_b32 s{sT[0]}, s{sT[1]}, 9")
    vm, lg = gemm("Q")
    AQ, AK, AV = 64, 80, 96
    PK, VF = 32768, 0
    aphi_pack(a, 24, 144, 8, 4)
    for i in range(8): a(f"v_cvt_pk_bf16_f32 v{32+i}, v{AK+2*i}, v{AK+2*i+1}")
    a(f"v_mfma_f32_32x32x16_bf16 {vr(112,16)}, {vr(24,4)}, {vr(32,4)}, 0")
    a(f"v_mfma_f32_32x32x16_bf16 {vr(128,16)}, {vr(28,4)}, {vr(36,4)}, 0")
    for i in range(8): a(f"v_cvt_pk_bf16_f32 v{40+i}, v{AQ+2*i}, v{AQ+2*i+1}")
    a(f"s_lshr_b32 s23, s{s_rb}, 1"); a("s_lshl_b32 s23, s23, 5"); a(f"s_add_u32 s23, s23, s{sT[1]}"); a("s_lshl_b32 s23, s23, 3")
    a(f"s_and_b32 s22, s{s_rb}, 1"); a("s_lshl_b32 s22, s22, 2"); a("s_add_u32 s23, s23, s22"); a(f"s_add_u32 s23, s23, s{s_mt}")
    a("s_lshl_b32 s23, s23, 10"); a(f"s_add_u32 s{sT[2]}, s23, {WS_QF}"); a(f"s_add_u32 s{sT[3]}, s{sT[2]}, 8192")
    a(f"buffer_store_dwordx4 {vr(40,4)}, v{vL16}, s[{sWS}:{sWS+3}], s{sT[2]} offen {opt.get('st1','')}")
    a(f"buffer_store_dwordx4 {vr(44,4)}, v{vL16}, s[{sWS}:{sWS+3}], s{sT[3]} offen {opt.get('st1','')}")
    for i in range(8): a(f"v_cvt_pk_bf16_f32 v{48+i}, v{AV+2*i}, v{AV+2*i+1}")
    a(f"s_lshl_b32 s23, s{s_w}, 11")
    a(f"v_add_u32 v5, s23, v{vL16}")
    a(f"ds_write_b128 v5, {vr(48,4)} offset:{VF}")
    a(f"ds_write_b128 v5, {vr(52,4)} offset:{VF+1024}")
    a(f"v_bfe_u32 v4, v{vm_}, 1, 2"); a(f"v_lshlrev_b32 v6, 1, v{vhf}"); a("v_xor_b32 v4, v4, v6"); a("v_lshlrev_b32 v4, 4, v4")
    a(f"v_lshl_add_u32 v4, v{vm_}, 6, v4")
    a(f"s_lshl_b32 s23, s{s_p}, 14"); a(f"s_lshl_b32 s22, s{s_mt}, 11"); a("s_add_u32 s23, s23, s22"); a(f"s_add_u32 s23, s23, {PK}")
    a("v_add_u32 v13, s23, v4"); a("v_xor_b32 v14, 16, v13")
    for e in range(2):
        softmax16(a, 112 + 16*e, 6, sL, 144 + 8*e)
        a(f"ds_write_b128 v13, {vr(144+8*e,4)} offset:{e*8192}")
        a(f"ds_write_b128 v14, {vr(148+8*e,4)} offset:{e*8192}")
    a("s_waitcnt lgkmcnt(0)"); a("s_barrier")
    a(f"s_cmp_ge_u32 s{s_w}, 4"); a("s_cbranch_scc1 K1_END")
    a("v_and_b32 v4, 1, v0"); a("v_lshlrev_b32 v4, 1, v4"); a("v_bfe_u32 v5, v0, 4, 1"); a("v_add_u32 v4, v4, v5")
    a(f"v_lshrrev_b32 v6, 1, v{vr_}"); a(f"v_lshl_add_u32 v6, v{vhf}, 1, v6")
    a("v_xor_b32 v4, v4, v6"); a("v_lshlrev_b32 v4, 4, v4")
    a("v_bfe_u32 v6, v0, 1, 1"); a("v_lshl_add_u32 v4, v6, 3, v4")
    a(f"v_lshl_add_u32 v6, v{vhf}, 2, v{vr_}"); a("v_lshl_add_u32 v4, v6, 6, v4")
    a(f"s_lshl_b32 s23, s{s_w}, 13"); a(f"s_add_u32 s23, s23, {PK}"); a("v_add_u32 v13, s23, v4")
    a(f"s_lshr_b32 s23, s{s_w}, 1"); a("s_lshl_b32 s23, s23, 13"); a(f"v_add_u32 v14, s23, v{vL16}")
    a(f"s_and_b32 s22, s{s_w}, 1")
    a("v_cmp_ne_u32 s[62:63], s22, v5")
    a("v_mov_b32 v15, 0x3f803f80")
    lg = Cnt(a, "lgkmcnt", 15)
    def kvread(u):
        f = 32 + (u & 3)*8
        a(f"ds_read_b64_tr_b16 {vr(f,2)}, v13 offset:{u*1024}"); lg.issue(u)
        a(f"ds_read_b64_tr_b16 {vr(f+2,2)}, v13 offset:{u*1024+512}"); lg.issue(u)
        a(f"ds_read_b128 {vr(f+4,4)}, v14 offset:{VF + u*1024}"); lg.issue(u)
    for u in range(4): kvread(u)
    for u in range(8):
        f = 32 + (u & 3)*8
        lg.wait(u)
        for i in range(4): a(f"v_cndmask_b32 v{f+4+i}, v{f+4+i}, v15, s[62:63]")
        a(f"v_mfma_f32_32x32x16_bf16 {vr(64,16)}, {vr(f,4)}, {vr(f+4,4)}, {'0' if u == 0 else vr(64,16)}")
        if u + 4 < 8: kvread(u + 4)
    a("v_and_b32 v4, 15, v0"); a("v_lshlrev_b32 v4, 4, v4"); a(f"v_lshl_add_u32 v4, v{vhf}, 8, v4")
    a(f"v_lshlrev_b32 v6, 4, v{vhf}"); a("v_add_u32 v6, 512, v6")
    a("v_cndmask_b32 v4, v4, v6, s[62:63]")
    a(f"s_lshl_b32 s23, s{s_t}, 2"); a(f"s_add_u32 s23, s23, s{s_w}"); a(f"s_mul_i32 s23, s23, {KV_H}")
    a(f"s_mul_i32 s22, s{s_rb}, {KV_P}"); a("s_add_u32 s23, s23, s22"); a(f"s_add_u32 s23, s23, {WS_KV}")
    for q in range(4):
        a(f"buffer_store_dwordx4 {vr(64+4*q,4)}, v4, s[{sWS}:{sWS+3}], s23 offen offset:{q*544} {opt.get('st1','')}")
    a("s_endpgm")

    a("K1_AUX:")
    srd(a, sP, 18, 1024)
    a("v_lshrrev_b32 v4, 3, v0"); a("v_and_b32 v5, 7, v0"); a("v_lshlrev_b32 v5, 4, v5")
    a("v_lshl_add_u32 v6, v4, 10, v5")
    a(f"s_lshl_b32 s23, s{s_rb}, 17"); a(f"s_lshl_b32 s22, s{s_w}, 14"); a("s_add_u32 s23, s23, s22"); a("s_add_u32 s22, s23, 8192")
    for c in range(8): a(f"buffer_load_dwordx4 {vr(16+4*c,4)}, v5, s[{sP}:{sP+3}], 0 offen offset:{c*128}")
    for c in range(8): a(f"buffer_load_dwordx4 {vr(48+4*c,4)}, v6, s[{sX}:{sX+3}], s23 offen offset:{c*128}")
    for c in range(8): a(f"buffer_load_dwordx4 {vr(80+4*c,4)}, v6, s[{sX}:{sX+3}], s22 offen offset:{c*128}")
    a("v_mov_b32 v112, 0"); a("v_mov_b32 v113, 0")
    a("s_waitcnt vmcnt(8)")
    for i in range(32): a(f"v_dot2c_f32_bf16 v112, v{48+i}, v{16+i}")
    a("s_waitcnt vmcnt(0)")
    for i in range(32): a(f"v_dot2c_f32_bf16 v113, v{80+i}, v{16+i}")
    a("s_nop 2")
    for r in (112, 113):
        a(f"v_add_f32 v{r}, v{r}, v{r} quad_perm:[1,0,3,2] row_mask:0xf bank_mask:0xf")
    for r in (112, 113):
        a(f"v_add_f32 v{r}, v{r}, v{r} quad_perm:[2,3,0,1] row_mask:0xf bank_mask:0xf")
    for r in (112, 113):
        a(f"v_add_f32 v{r}, v{r}, v{r} row_half_mirror row_mask:0xf bank_mask:0xf")
    for r in (112, 113):
        a(f"v_mul_f32 v{r}, s{sL}, v{r}")
        a(f"v_exp_f32 v{r}, -v{r}")
        a(f"v_add_f32 v{r}, 1.0, v{r}")
        a(f"v_rcp_f32 v{r}, v{r}")
    a("v_lshlrev_b32 v4, 2, v4")
    a(f"s_lshl_b32 s23, s{s_rb}, 9"); a(f"s_lshl_b32 s22, s{s_w}, 6"); a("s_add_u32 s23, s23, s22"); a(f"s_add_u32 s23, s23, {WS_G}")
    a(f"buffer_store_dword v112, v4, s[{sWS}:{sWS+3}], s23 offen")
    a(f"buffer_store_dword v113, v4, s[{sWS}:{sWS+3}], s23 offen offset:32")
    a("K1_END:")
    a("s_endpgm")
    return descriptor(name, 160, 72), 147456

def gen_k2(a, opt):
    name = "k2_kernel"
    D = opt.get("D", 8)
    header(a, name)
    sW2, sWO, sWS, sP, sO, sDB = 28, 32, 36, 40, 44, 48
    s_w, s_mp, s_np, s_rg, s_h = 52, 53, 54, 55, 56
    sB, sA, sL, sLB, sC = 57, 58, 59, 60, 61
    a("s_cmp_ge_u32 s2, 256"); a("s_cbranch_scc1 K2_END")
    a("s_load_dwordx16 s[4:19], s[0:1], 0")
    a("s_load_dwordx4 s[20:23], s[0:1], 64")
    a("s_load_dwordx2 s[24:25], s[0:1], 80")
    a("v_lshrrev_b32 v1, 6, v0"); a("v_and_b32 v0, 63, v0")
    a(f"v_readfirstlane_b32 s{s_w}, v1")
    a(f"s_and_b32 s{s_rg}, s2, 7"); a(f"s_lshr_b32 s{s_h}, s2, 3")
    if opt.get("map2", "A") == "A":
        a(f"s_lshl_b32 s{s_mp}, s{s_rg}, 2"); a(f"s_lshr_b32 s3, s{s_h}, 3"); a(f"s_add_u32 s{s_mp}, s{s_mp}, s3")
        a(f"s_and_b32 s{s_np}, s{s_h}, 7")
    else:
        a(f"s_lshr_b32 s3, s{s_rg}, 1"); a(f"s_lshl_b32 s{s_mp}, s3, 3"); a(f"s_lshr_b32 s3, s{s_h}, 2"); a(f"s_add_u32 s{s_mp}, s{s_mp}, s3")
        a(f"s_and_b32 s3, s{s_rg}, 1"); a("s_lshl_b32 s3, s3, 2"); a(f"s_and_b32 s{s_np}, s{s_h}, 3"); a(f"s_add_u32 s{s_np}, s{s_np}, s3")
    a(f"s_mov_b32 s{sL}, {LOG2E}")
    vm_, vhf, vr_, vlo, vL16 = 8, 9, 10, 11, 12
    a(f"v_and_b32 v{vm_}, 31, v0"); a(f"v_lshrrev_b32 v{vhf}, 5, v0"); a(f"v_bfe_u32 v{vr_}, v0, 2, 2")
    a("v_bfe_u32 v4, v0, 4, 1"); a("v_and_b32 v5, 3, v0"); a("v_lshlrev_b32 v5, 3, v5"); a(f"v_lshl_add_u32 v{vlo}, v4, 5, v5")
    a(f"v_lshlrev_b32 v{vL16}, 4, v0")
    a("v_and_b32 v5, 15, v0"); a("v_lshlrev_b32 v5, 4, v5"); a(f"v_lshl_add_u32 v5, v{vhf}, 8, v5")
    a(f"v_lshlrev_b32 v6, 4, v{vhf}"); a("v_add_u32 v6, 512, v6")
    a("v_cmp_eq_u32 vcc, 1, v4")
    a("v_cndmask_b32 v13, v5, v6, vcc")
    aphi_addr(a, 14, 0, 5, 6)
    a("v_lshrrev_b32 v5, 3, v0"); a("v_lshlrev_b32 v4, 2, v4"); a("v_and_b32 v6, 7, v0"); a("v_xor_b32 v4, v4, v6"); a("v_lshlrev_b32 v4, 4, v4")
    a("v_lshl_add_u32 v15, v5, 10, v4"); a("v_add_u32 v16, 7168, v15")
    a(f"s_and_b32 s3, s{s_w}, 1"); a("s_lshl_b32 s26, s3, 10")
    a(f"v_add_u32 v17, s26, v{vL16}"); a("v_xor_b32 v18, 1024, v17")
    a(f"s_lshl_b32 s{sLB}, s{s_w}, {11 + (D-1).bit_length()}")
    a(f"v_lshl_add_u32 v4, v{vhf}, 2, v{vr_}"); a("v_lshlrev_b32 v4, 7, v4"); a(f"v_add_u32 v4, v4, v{vlo}"); a(f"v_add_u32 v4, s{sLB}, v4")
    a(f"s_lshr_b32 s27, s{s_w}, 1")
    a(f"v_lshrrev_b32 v5, 1, v{vr_}"); a("v_xor_b32 v5, s27, v5")
    a("v_lshl_add_u32 v19, v5, 6, v4"); a("v_xor_b32 v20, 64, v19")
    a(f"v_lshlrev_b32 v21, 2, v{vm_}")
    a("v_mov_b32 v22, 0")
    RING = 4 * D * 2048
    KVZ = RING; CNTR = RING + 2048
    LDS = max(RING + 2048 + 64, 49152)
    a(f"v_mov_b32 v23, {CNTR}")
    a("ds_write_b32 v23, v22")
    a("s_waitcnt lgkmcnt(0)")
    srd(a, sW2, 16, 1792 * 1024); srd(a, sWO, 10, 512 * 1024); srd(a, sWS, 24, WS_SIZE); srd(a, sP, 8, 32 * 512)
    srd(a, sO, 20, 2048 * 1024); srd(a, sDB, 22, 256)
    vm = Cnt(a, "vmcnt", 63); lg = Cnt(a, "lgkmcnt", 15)
    ACC, BR, WF = 64, 128, 128 + 8*D
    TMP = WF + 16
    a(f"s_mul_i32 s26, s{s_h}, {KV_H}"); a(f"s_mul_i32 s3, s{s_w}, 544"); a("s_add_u32 s26, s26, s3"); a(f"s_add_u32 s26, s26, {WS_KV}")
    a(f"s_lshl_b32 s3, s{s_rg}, 5"); a(f"s_add_u32 s3, s3, s{s_h}"); a("s_lshl_b32 s3, s3, 13"); a(f"s_lshl_b32 s27, s{s_w}, 11"); a("s_add_u32 s3, s3, s27"); a(f"s_add_u32 s3, s3, {WS_QF}")
    QF = 24
    for u in range(2):
        a(f"buffer_load_dwordx4 {vr(QF+4*u,4)}, v{vL16}, s[{sWS}:{sWS+3}], s3 offen offset:{u*1024}"); vm.issue("q")
    PH = 32
    a(f"s_lshl_b32 s3, s{s_h}, 9")
    aphi_load(a, vm, 48, 14, sP, "s3", "q")
    for rb in range(16):
        a(f"buffer_load_dwordx4 {vr(ACC+4*rb,4)}, v13, s[{sWS}:{sWS+3}], s26 offen"); vm.issue(("p", rb // 4))
        if rb < 15: a(f"s_add_u32 s26, s26, {KV_P}")
    a(f"s_lshl_b32 s3, s{s_rg}, 10"); a(f"s_lshl_b32 s27, s{s_w}, 8"); a("s_add_u32 s3, s3, s27"); a(f"s_add_u32 s3, s3, {WS_G}")
    a(f"buffer_load_dword v36, v21, s[{sWS}:{sWS+3}], s3 offen"); vm.issue("g")
    a(f"buffer_load_dword v37, v21, s[{sWS}:{sWS+3}], s3 offen offset:128"); vm.issue("g")
    a(f"s_lshl_b32 s3, s{s_mp}, 8"); a(f"s_add_u32 s3, s3, {WS_G}"); a(f"s_and_b32 s27, s{s_w}, 1"); a("s_lshl_b32 s27, s27, 7")
    a("s_add_u32 s26, s3, s27"); a("s_xor_b32 s27, s27, 128"); a("s_add_u32 s27, s3, s27")
    a(f"buffer_load_dword v38, v21, s[{sWS}:{sWS+3}], s26 offen"); vm.issue("g")
    a(f"buffer_load_dword v39, v21, s[{sWS}:{sWS+3}], s27 offen"); vm.issue("g")
    a(f"s_mul_i32 s{sB}, s{s_mp}, {AF_MP}"); a(f"s_mul_i32 s3, s{s_w}, {28*2048}"); a(f"s_add_u32 s{sB}, s{sB}, s3")
    a(f"s_lshl_b32 s{sA}, s{s_np}, 7"); a(f"s_mul_i32 s3, s{s_w}, {28*16384}"); a(f"s_add_u32 s{sA}, s{sA}, s3")
    NS = 36
    def loads(i):
        slot = i % D
        if i == 28:
            a(f"s_mul_i32 s{sB}, s{s_mp}, {AF_MP}"); a(f"s_lshl_b32 s3, s{s_w}, 14"); a(f"s_add_u32 s{sB}, s{sB}, s3"); a(f"s_add_u32 s{sB}, s{sB}, {112*2048}")
            a(f"s_lshl_b32 s{sA}, s{s_np}, 7"); a(f"s_lshl_b32 s3, s{s_w}, 17"); a(f"s_add_u32 s{sA}, s{sA}, s3")
        sw = sW2 if i < 28 else sWO
        fl = "" if i < 28 else "sc1"
        a(f"s_add_u32 m0, s{sLB}, {slot*2048}")
        a(f"buffer_load_dwordx4 {vr(BR+8*slot,4)}, v17, s[{sWS}:{sWS+3}], s{sB} offen {fl}"); vm.issue(("l", i))
        a(f"buffer_load_dwordx4 v15, s[{sw}:{sw+3}], s{sA} offen lds"); vm.issue(("l", i))
        a(f"buffer_load_dwordx4 {vr(BR+8*slot+4,4)}, v18, s[{sWS}:{sWS+3}], s{sB} offen {fl}"); vm.issue(("l", i))
        a(f"buffer_load_dwordx4 v16, s[{sw}:{sw+3}], s{sA} offen offset:1024 lds"); vm.issue(("l", i))
        a(f"s_add_u32 s{sB}, s{sB}, 2048"); a(f"s_add_u32 s{sA}, s{sA}, 16384")
    for i in range(D): loads(i)
    vm.wait("q")
    aphi_pack(a, PH, 48, 4, 4)
    PQ = [TMP, TMP + 16]
    for u in range(2):
        a(f"v_mfma_f32_32x32x16_bf16 {vr(PQ[u],16)}, {vr(PH,4)}, {vr(QF+4*u,4)}, 0")
    for grp in range(4):
        vm.wait(("p", grp))
        for rb in range(4*grp, 4*grp + 4):
            if rb == 0: continue
            for i in range(4): a(f"v_add_f32 v{ACC+i}, v{ACC+i}, v{ACC+4*rb+i}")
    a(f"v_cvt_pk_bf16_f32 v40, v{ACC}, v{ACC+1}"); a(f"v_cvt_pk_bf16_f32 v41, v{ACC+2}, v{ACC+3}")
    a(f"s_lshr_b32 s3, s{s_w}, 1"); a("s_lshl_b32 s3, s3, 10"); a(f"s_and_b32 s27, s{s_w}, 1"); a("s_lshl_b32 s27, s27, 3"); a("s_add_u32 s3, s3, s27"); a(f"s_add_u32 s3, s3, {KVZ}")
    a(f"v_add_u32 v5, s3, v{vL16}")
    a("ds_write_b64 v5, v[40:41]")
    PHQ = [48, 56]
    for u in range(2): softmax16(a, PQ[u], 6, sL, PHQ[u])
    a("s_waitcnt lgkmcnt(0)"); a("s_barrier")
    a(f"v_add_u32 v5, {KVZ}, v{vL16}")
    a(f"ds_read_b128 {vr(40,4)}, v5"); a(f"ds_read_b128 {vr(44,4)}, v5 offset:1024")
    a("s_waitcnt lgkmcnt(0)")
    for u in range(2):
        a(f"v_mfma_f32_32x32x16_bf16 {vr(PQ[u],16)}, {vr(40,4)}, {vr(PHQ[u],4)}, 0")
        a(f"v_mfma_f32_32x32x16_bf16 {vr(PQ[u],16)}, {vr(44,4)}, {vr(PHQ[u]+4,4)}, {vr(PQ[u],16)}")
    vm.wait("g")
    a(f"s_lshl_b32 s3, s{s_rg}, 2"); a(f"s_add_u32 s3, s3, s{s_w}"); a(f"s_mul_i32 s3, s3, {AF_MP}"); a(f"s_lshl_b32 s27, s{s_h}, 11"); a("s_add_u32 s3, s3, s27"); a(f"s_add_u32 s3, s3, {112*2048}")
    a("v_sub_f32 v38, 1.0, v38"); a("v_sub_f32 v39, 1.0, v39")
    for u in range(2):
        P = PQ[u]
        a(f"v_add_f32 v6, 0x358637bd, v{P+8}")
        a("v_rcp_f32 v6, v6")
        a(f"v_mul_f32 v6, v6, v{36+u}")
        for i in range(8): a(f"v_mul_f32 v{P+i}, v{P+i}, v6")
        for i in range(4): a(f"v_cvt_pk_bf16_f32 v{QF+4*u+i}, v{P+2*i}, v{P+2*i+1}")
        a(f"buffer_store_dwordx4 {vr(QF+4*u,4)}, v{vL16}, s[{sWS}:{sWS+3}], s3 offen offset:{u*1024} sc1"); vm.issue("ost")
    a(f"s_lshl_b32 s{sC}, s{s_rg}, 5")
    a(f"s_lshr_b32 s62, s{s_mp}, 2"); a("s_lshl_b32 s62, s62, 5")
    def reads(i):
        slot = i % D; f = WF + (i & 1)*8
        for t in range(2):
            for sec in range(2):
                a(f"ds_read_b64_tr_b16 {vr(f+4*t+2*sec,2)}, v{19+t} offset:{slot*2048 + sec*1024}"); lg.issue(("f", i))
    def mfmas(i):
        slot = i % D; f = WF + (i & 1)*8
        for t in range(2):
            for im in range(2):
                d = ACC + (2*t + im)*16
                a(f"v_mfma_f32_32x32x16_bf16 {vr(d,16)}, {vr(f+4*t,4)}, {vr(BR+8*slot+4*im,4)}, {'0' if i == 0 else vr(d,16)}")
    SIG = opt.get("sig", 3); POLL = opt.get("poll", 28 - D - 4)
    vm.wait(("l", 0)); reads(0)
    for i in range(NS):
        if i + 1 < NS:
            vm.wait(("l", i+1)); reads(i+1)
        lg.wait(("f", i))
        if i == 28:
            for t in range(4):
                for r in range(16): a(f"v_mul_f32 v{ACC+16*t+r}, v{ACC+16*t+r}, v{38 + (t & 1)}")
        mfmas(i)
        if i == SIG:
            vm.wait("ost")
            a("v_mov_b32 v4, 1")
            a("s_mov_b64 exec, 1")
            a("ds_add_rtn_u32 v5, v23, v4"); lg.issue("cnt")
            lg.wait("cnt")
            a("v_cmp_eq_u32 vcc, 3, v5")
            a("s_cbranch_vccz K2_NOSIG")
            a(f"buffer_atomic_add v4, v22, s[{sDB}:{sDB+3}], s{sC} offen sc1")
            a("s_branch K2_SIGD")
            a("K2_NOSIG:")
            a(f"buffer_load_dword v5, v22, s[{sDB}:{sDB+3}], s{sC} offen sc1")
            a("K2_SIGD:")
            vm.issue("sig")
            a("s_mov_b64 exec, -1")
        if i == POLL:
            a(f"buffer_load_dword v7, v22, s[{sDB}:{sDB+3}], s62 offen sc1"); vm.issue("poll")
        if i + D == 28:
            vm.wait("poll")
            a("v_readfirstlane_b32 s3, v7")
            a("s_mov_b32 s63, 0")
            a("K2_SPIN:")
            a("s_cmp_ge_u32 s3, 32"); a("s_cbranch_scc1 K2_GO")
            a("s_add_u32 s63, s63, 1"); a("s_cmp_ge_u32 s63, 0x40000"); a("s_cbranch_scc1 K2_GO")
            a("s_sleep 2")
            a(f"buffer_load_dword v7, v22, s[{sDB}:{sDB+3}], s62 offen sc1")
            a("s_waitcnt vmcnt(0)")
            a("v_readfirstlane_b32 s3, v7")
            a("s_branch K2_SPIN")
            a("K2_GO:")
        if i + D < NS: loads(i + D)
    a("s_barrier")
    for t in range(1, 4):
        a(f"s_xor_b32 s3, s{s_w}, {t}"); a("s_mul_i32 s3, s3, 12288")
        a(f"v_add_u32 v4, s3, v{vL16}")
        for q in range(4): a(f"ds_write_b128 v4, {vr(ACC+16*t+4*q,4)} offset:{(t-1)*4096 + q*1024}")
    a(f"s_mul_i32 s3, s{s_w}, 12288"); a(f"v_add_u32 v5, s3, v{vL16}")
    a(f"v_lshlrev_b32 v6, 10, v{vm_}"); a(f"v_lshl_add_u32 v6, v{vhf}, 4, v6")
    a(f"s_lshl_b32 s3, s{s_mp}, 16"); a(f"s_and_b32 s27, s{s_w}, 1"); a("s_lshl_b32 s27, s27, 15"); a("s_add_u32 s3, s3, s27")
    a(f"s_lshl_b32 s27, s{s_np}, 7"); a("s_add_u32 s3, s3, s27"); a(f"s_lshr_b32 s27, s{s_w}, 1"); a("s_lshl_b32 s27, s27, 6"); a("s_add_u32 s3, s3, s27")
    a("s_waitcnt lgkmcnt(0)"); a("s_barrier")
    lg.drain()
    for t in range(3):
        for q in range(4):
            a(f"ds_read_b128 {vr(BR+16*t+4*q,4)}, v5 offset:{t*4096 + q*1024}"); lg.issue(t)
    for t in range(3):
        lg.wait(t)
        for r in range(16): a(f"v_add_f32 v{ACC+r}, v{ACC+r}, v{BR+16*t+r}")
    for i in range(8): a(f"v_cvt_pk_bf16_f32 v{24+i}, v{ACC+2*i}, v{ACC+2*i+1}")
    a("v_permlane32_swap_b32 v24, v26"); a("v_permlane32_swap_b32 v25, v27")
    a("v_permlane32_swap_b32 v28, v30"); a("v_permlane32_swap_b32 v29, v31")
    a(f"buffer_store_dwordx4 {vr(24,4)}, v6, s[{sO}:{sO+3}], s3 offen")
    a(f"buffer_store_dwordx4 {vr(28,4)}, v6, s[{sO}:{sO+3}], s3 offen offset:32")
    a("K2_END:")
    a("s_endpgm")
    return descriptor(name, TMP + 32, 72), LDS

def generate(opt=None):
    opt = opt or {}
    a = Asm()
    a(".text")
    d1, lds1 = gen_k1(a, opt)
    d2, lds2 = gen_k2(a, opt)
    body = a.finalize()
    head = open("cdna_kernels/" + NAME + ".s.ref").read().split("; Override launch")[0]
    head += f"; @launch kernel=k1_kernel grid=(256,1,1) block=(512,1,1) lds={lds1}\n"
    head += f"; @launch kernel=k2_kernel grid=(256,1,1) block=(256,1,1) lds={lds2}\n"
    head += '.amdgcn_target "amdgcn-amd-amdhsa--gfx950"\n'
    return head + body + '.section .rodata,"a"\n' + d1 + d2

if __name__ == "__main__":
    out = sys.argv[1] if len(sys.argv) > 1 else "cdna_kernels/" + NAME + ".s"
    opt = {}
    for kv in sys.argv[2:]:
        k, v = kv.split("=", 1)
        opt[k] = int(v) if v.lstrip("-").isdigit() else v
    open(out, "w").write(generate(opt))
    print("wrote", out)
```

```python
import sys
from asmlib import Asm

NAME = "gated_mix__linear_kernel_hedgehog__dense_activation_relu__prompt"
WS_AF = 0
AF_MP = 144 * 2048
WS_QF = 0xA00000
WS_KV = 0xC00000
KV_P = 2176; KV_H = 16 * KV_P
WS_G = 0xE00000
WS_ST = 0xF00000
WS_SIZE = 0x1000000
LOG2E = 0x3fb8aa3b

class Cnt:
    def __init__(self, a, name, maxv): self.a, self.name, self.maxv, self.q = a, name, maxv, []
    def issue(self, tag): self.q.append(tag)
    def n_after(self, tag):
        idx = max(i for i, t in enumerate(self.q) if t == tag)
        return len(self.q) - 1 - idx
    def val(self, tag):
        if tag not in self.q: return None
        n = self.n_after(tag)
        self.q = self.q[len(self.q) - n:] if n else []
        return min(n, self.maxv)
    def wait(self, tag):
        v = self.val(tag)
        if v is not None: self.a(f"s_waitcnt {self.name}({v})")
    def drain(self): self.q = []

def vr(b, n): return f"v[{b}:{b+n-1}]"

def srd(a, d, lo, nbytes):
    a(f"s_mov_b32 s{d}, s{lo}"); a(f"s_mov_b32 s{d+1}, s{lo+1}"); a(f"s_mov_b32 s{d+2}, {nbytes}"); a(f"s_mov_b32 s{d+3}, 0x00020000")

def softmax16(a, P, T, sL, out):
    a(f"v_max3_f32 v{T}, v{P}, v{P+1}, v{P+2}")
    a(f"v_max3_f32 v{T+1}, v{P+3}, v{P+4}, v{P+5}")
    a(f"v_max3_f32 v{T}, v{T}, v{P+6}, v{P+7}")
    a(f"v_max3_f32 v{T+1}, v{T+1}, v{P+8}, v{P+9}")
    a(f"v_max3_f32 v{T}, v{T}, v{P+10}, v{P+11}")
    a(f"v_max3_f32 v{T+1}, v{T+1}, v{P+12}, v{P+13}")
    a(f"v_max3_f32 v{T}, v{T}, v{P+14}, v{P+15}")
    a(f"v_max_f32 v{T}, v{T}, v{T+1}")
    a(f"v_mul_f32 v{T}, s{sL}, v{T}")
    for i in range(16): a(f"v_fma_f32 v{P+i}, v{P+i}, s{sL}, -v{T}")
    for i in range(16): a(f"v_exp_f32 v{P+i}, v{P+i}")
    a(f"v_add_f32 v{T}, v{P}, v{P+1}")
    a(f"v_add_f32 v{T+1}, v{P+2}, v{P+3}")
    for i in range(4, 16, 2):
        a(f"v_add_f32 v{T}, v{T}, v{P+i}")
        a(f"v_add_f32 v{T+1}, v{T+1}, v{P+i+1}")
    a(f"v_add_f32 v{T}, v{T}, v{T+1}")
    a(f"v_rcp_f32 v{T}, v{T}")
    for i in range(16): a(f"v_mul_f32 v{P+i}, v{P+i}, v{T}")
    for i in range(8): a(f"v_cvt_pk_bf16_f32 v{out+i}, v{P+2*i}, v{P+2*i+1}")

def aphi_addr(a, vdst, vlane, t0, t1):
    a(f"v_lshrrev_b32 v{t0}, 5, v{vlane}")
    a(f"v_lshlrev_b32 v{t0}, 7, v{t0}")
    a(f"v_bfe_u32 v{t1}, v{vlane}, 3, 2")
    a(f"v_lshl_add_u32 v{t0}, v{t1}, 3, v{t0}")
    a(f"v_and_b32 v{t1}, 3, v{vlane}")
    a(f"v_lshl_add_u32 v{vdst}, v{t1}, 1, v{t0}")

def aphi_load(a, vm, tmp, vaddr, sSRD, soff, tag, extra=0):
    for j in range(8):
        d = j if j < 4 else j + 4
        a(f"buffer_load_ushort v{tmp + j}, v{vaddr}, s[{sSRD}:{sSRD+3}], {soff} offen offset:{d*32 + extra}")
        vm.issue(tag)

def aphi_pack(a, dst, tmp, n, vsign):
    a(f"v_bfe_u32 v{vsign}, v0, 2, 1"); a(f"v_mul_u32_u24 v{vsign}, 0x8000, v{vsign}"); a(f"v_lshl_or_b32 v{vsign}, v{vsign}, 16, v{vsign}")
    for i in range(n): a(f"v_lshl_or_b32 v{dst+i}, v{tmp+2*i+1}, 16, v{tmp+2*i}")
    for i in range(n): a(f"v_xor_b32 v{dst+i}, v{dst+i}, v{vsign}")

def header(a, name):
    a(f".globl {name}"); a(".p2align 8"); a(f".type {name},@function"); a(f"{name}:")

def descriptor(name, nv, ns):
    nv = (nv + 7) // 8 * 8
    return f""".p2align 6
.amdhsa_kernel {name}
  .amdhsa_next_free_vgpr {nv}
  .amdhsa_next_free_sgpr {ns}
  .amdhsa_accum_offset {nv}
  .amdhsa_group_segment_fixed_size 0
  .amdhsa_kernarg_size 88
  .amdhsa_user_sgpr_count 2
  .amdhsa_user_sgpr_kernarg_segment_ptr 1
  .amdhsa_system_sgpr_workgroup_id_x 1
.end_amdhsa_kernel
"""

def gen_k1(a, opt):
    name = "k1_kernel"
    header(a, name)
    sX, sW, sWS, sP = 28, 32, 36, 40
    s_w, s_rb, s_t, s_w1k = 44, 45, 46, 47
    sXo = [48, 49]; sWo = [50, 51, 52, 53]; sT = [54, 55, 56, 57]; sL = 58
    ST = opt.get("stamp", 0)
    if ST: a("s_memrealtime s[64:65]")
    a("s_cmp_ge_u32 s2, 256"); a("s_cbranch_scc1 K1_END")
    def k1_fin():
        if ST:
            a("s_waitcnt vmcnt(0)"); a("s_memrealtime s[70:71]"); a("s_waitcnt lgkmcnt(0)")
            a(f"s_lshl_b32 s23, s2, 3"); a(f"s_add_u32 s23, s23, s{s_w}"); a("s_lshl_b32 s23, s23, 4"); a(f"s_add_u32 s23, s23, {WS_ST}")
            a("v_mov_b32 v4, s64"); a("v_mov_b32 v5, s66"); a("v_mov_b32 v6, s68"); a("v_mov_b32 v7, s70"); a("v_mov_b32 v1, 0")
            a(f"buffer_store_dwordx4 v[4:7], v1, s[{sWS}:{sWS+3}], s23 offen")
        a("s_endpgm")
    a("s_load_dwordx16 s[4:19], s[0:1], 0")
    a("s_load_dwordx2 s[24:25], s[0:1], 80")
    a("v_lshrrev_b32 v1, 6, v0"); a("v_and_b32 v0, 63, v0")
    a(f"v_readfirstlane_b32 s{s_w}, v1")
    a("s_and_b32 s20, s2, 7"); a("s_lshr_b32 s21, s2, 3")
    if opt.get("map1", "A") == "A":
        a(f"s_lshl_b32 s{s_rb}, s20, 1"); a("s_lshr_b32 s22, s21, 4"); a(f"s_add_u32 s{s_rb}, s{s_rb}, s22")
        a(f"s_and_b32 s{s_t}, s21, 15")
    else:
        a("s_lshr_b32 s22, s20, 1"); a(f"s_lshl_b32 s{s_rb}, s22, 2"); a("s_lshr_b32 s22, s21, 3"); a(f"s_add_u32 s{s_rb}, s{s_rb}, s22")
        a("s_and_b32 s22, s20, 1"); a("s_lshl_b32 s22, s22, 3"); a(f"s_and_b32 s{s_t}, s21, 7"); a(f"s_add_u32 s{s_t}, s{s_t}, s22")
    a(f"s_lshl_b32 s{s_w1k}, s{s_w}, 10")
    a(f"s_mov_b32 s{sL}, {LOG2E}")
    vXs, vWs = 2, 3
    a("v_lshrrev_b32 v4, 3, v0")
    a("v_lshrrev_b32 v5, 4, v0")
    a(f"s_and_b32 s22, s{s_w}, 1"); a("s_lshl_b32 s23, s22, 2")
    a("v_add_u32 v5, s23, v5")
    a("v_and_b32 v6, 7, v0")
    a("v_xor_b32 v5, v5, v6")
    a("v_lshlrev_b32 v5, 4, v5")
    a(f"v_lshl_add_u32 v{vXs}, v4, 10, v5")
    a(f"s_lshl_b32 s{sXo[0]}, s{s_rb}, 17"); a(f"s_lshl_b32 s23, s{s_w}, 13"); a(f"s_add_u32 s{sXo[0]}, s{sXo[0]}, s23")
    a(f"s_add_u32 s{sXo[1]}, s{sXo[0]}, 65536")
    vm_, vhf, vr_, vlo = 8, 9, 10, 11
    a(f"v_and_b32 v{vm_}, 31, v0"); a(f"v_lshrrev_b32 v{vhf}, 5, v0"); a(f"v_bfe_u32 v{vr_}, v0, 2, 2")
    a("v_bfe_u32 v4, v0, 4, 1"); a("v_and_b32 v5, 3, v0"); a("v_lshlrev_b32 v5, 3, v5"); a(f"v_lshl_add_u32 v{vlo}, v4, 5, v5")
    vL16 = 12
    a(f"v_lshlrev_b32 v{vL16}, 4, v0")
    a("s_waitcnt lgkmcnt(0)")
    srd(a, sX, 4, 2048 * 1024); srd(a, sWS, 24, WS_SIZE)
    a(f"s_cmp_lt_u32 s{s_t}, 8"); a("s_cbranch_scc1 K1_QKV")
    a(f"s_cmp_eq_u32 s{s_t}, 15"); a("s_cbranch_scc1 K1_AUX")

    XB, WB = 0, 49152
    vXa = [16, 17, 18, 19]
    def xa_setup(rowbase_sgpr):
        a(f"v_bfe_u32 v4, v{vm_}, 1, 3")
        a(f"v_lshlrev_b32 v5, 7, v{vm_}")
        a(f"v_add_u32 v5, s{rowbase_sgpr}, v5")
        for kk in range(4):
            a(f"v_add_u32 v6, {2*kk}, v{vhf}")
            a("v_xor_b32 v6, v6, v4")
            a(f"v_lshl_add_u32 v{vXa[kk]}, v6, 4, v5")

    def gemm(kind):
        vm = Cnt(a, "vmcnt", 63); lg = Cnt(a, "lgkmcnt", 15)
        H = kind == "H"
        WST = 32768 if H else 24576
        nW = 4 if H else 3
        wstep = 64 * 3584 if H else 64 * 3072
        if not H:
            aphi_addr(a, 4, 0, 5, 6)
            aphi_load(a, vm, 144, 4, sP, f"s{sT[0]}", "phi")
            aphi_load(a, vm, 152, 4, sP, f"s{sT[0]}", "phi", extra=512)
        def dma(s):
            buf = s % 3
            for i in range(2):
                a(f"s_add_u32 m0, s{s_w1k}, {XB + buf*16384 + i*8192}")
                a(f"buffer_load_dwordx4 v{vXs}, s[{sX}:{sX+3}], s{sXo[i]} offen lds"); vm.issue(("st", s))
                if s < 7: a(f"s_add_u32 s{sXo[i]}, s{sXo[i]}, 128")
            for i in range(nW):
                a(f"s_add_u32 m0, s{s_w1k}, {WB + buf*WST + i*8192}")
                a(f"buffer_load_dwordx4 v{vWs}, s[{sW}:{sW+3}], s{sWo[i]} offen lds"); vm.issue(("st", s))
                if s < 7: a(f"s_add_u32 s{sWo[i]}, s{sWo[i]}, {wstep}")
        F = [32, 48]
        ACC = 64
        def reads(t):
            s, kk = t >> 2, t & 3; buf = s % 3; f = F[t & 1]
            if H:
                for i in range(2):
                    a(f"ds_read_b128 {vr(f+4*i,4)}, v{vXa[kk]} offset:{XB + buf*16384 + i*4096}"); lg.issue(("f", t))
                for i in range(2):
                    base = (22 if buf == 2 else 20) + i
                    for sec in range(2):
                        off = (0 if buf == 2 else buf*WST) + kk*8192 + sec*2048
                        a(f"ds_read_b64_tr_b16 {vr(f+8+4*i+2*sec,2)}, v{base} offset:{off}"); lg.issue(("f", t))
            else:
                a(f"ds_read_b128 {vr(f,4)}, v{vXa[kk]} offset:{XB + buf*16384}"); lg.issue(("f", t))
                base = 21 if buf == 2 else 20
                for sg in range(3):
                    for sec in range(2):
                        off = (0 if buf == 2 else buf*WST) + sg*8192 + kk*2048 + sec*512
                        a(f"ds_read_b64_tr_b16 {vr(f+4+4*sg+2*sec,2)}, v{base} offset:{off}"); lg.issue(("f", t))
        def mfmas(t):
            f = F[t & 1]
            if H:
                for i_n in range(2):
                    for i_m in range(2):
                        d = ACC + (2*i_n + i_m)*16
                        c = "0" if t == 0 else vr(d, 16)
                        a(f"v_mfma_f32_32x32x16_bf16 {vr(d,16)}, {vr(f+8+4*i_n,4)}, {vr(f+4*i_m,4)}, {c}")
            else:
                for sg in range(3):
                    d = ACC + sg*16
                    c = "0" if t == 0 else vr(d, 16)
                    if sg < 2: a(f"v_mfma_f32_32x32x16_bf16 {vr(d,16)}, {vr(f+4+4*sg,4)}, {vr(f,4)}, {c}")
                    else:      a(f"v_mfma_f32_32x32x16_bf16 {vr(d,16)}, {vr(f,4)}, {vr(f+4+4*sg,4)}, {c}")
        dma(0); dma(1); dma(2)
        vm.wait(("st", 0)); a("s_barrier")
        if ST: a("s_memrealtime s[66:67]"); a("s_waitcnt lgkmcnt(0)")
        reads(0)
        for t in range(32):
            s = t >> 2
            if (t & 3) == 3 and t < 31:
                v = vm.val(("st", s+1)); lg.drain()
                a(f"s_waitcnt vmcnt({v}) lgkmcnt(0)")
                a("s_barrier")
                reads(t+1)
                if s + 3 < 8: dma(s+3)
                mfmas(t)
            else:
                if t < 31: reads(t+1)
                lg.wait(("f", t))
                mfmas(t)
        if ST: a("s_memrealtime s[68:69]")
        return vm, lg

    srd(a, sW, 14, 512 * 3584)
    a("v_lshrrev_b32 v4, 5, v0")
    a("s_lshl_b32 s23, s22, 1")
    a("v_add_u32 v5, s23, v4")
    a("v_bfe_u32 v6, v0, 2, 3")
    a("v_xor_b32 v5, v5, v6")
    a("v_and_b32 v6, 3, v0"); a("v_lshlrev_b32 v6, 4, v6")
    a("v_lshl_add_u32 v5, v5, 6, v6")
    a("v_mul_u32_u24 v4, 3584, v4")
    a(f"v_add_u32 v{vWs}, v4, v5")
    a(f"s_sub_u32 s{s_t}, s{s_t}, 8")
    a(f"s_lshl_b32 s{sWo[0]}, s{s_t}, 9"); a(f"s_mul_i32 s23, s{s_w}, {2*3584}"); a(f"s_add_u32 s{sWo[0]}, s{sWo[0]}, s23")
    for i in range(1, 4): a(f"s_add_u32 s{sWo[i]}, s{sWo[0]}, {i*16*3584}")
    a("s_lshl_b32 s23, s22, 13")
    xa_setup(23)
    a(f"s_lshr_b32 s{sT[1]}, s{s_w}, 1")
    a(f"v_lshl_add_u32 v4, v{vhf}, 3, v{vr_}")
    a("v_lshlrev_b32 v4, 9, v4")
    a(f"v_add_u32 v4, v4, v{vlo}")
    a(f"v_add_u32 v4, {WB}, v4")
    a(f"s_lshl_b32 s23, s{sT[1]}, 1")
    for i in range(2):
        if i: a("s_add_u32 s23, s23, 1")
        a(f"v_xor_b32 v5, s23, v{vr_}")
        a(f"v_lshl_add_u32 v{20+i}, v5, 6, v4")
        a(f"v_add_u32 v{22+i}, 65536, v{20+i}")
    a(f"s_lshl_b32 s23, s{s_rb}, 1"); a("s_add_u32 s23, s23, s22"); a(f"s_mul_i32 s{sT[2]}, s23, {AF_MP}")
    a(f"s_lshl_b32 s23, s{s_t}, 15"); a(f"s_add_u32 s{sT[2]}, s{sT[2]}, s23")
    a(f"s_lshl_b32 s23, s{sT[1]}, 13"); a(f"s_add_u32 s{sT[2]}, s{sT[2]}, s23")
    a(f"s_add_u32 s{sT[3]}, s{sT[2]}, 4096")
    gemm("H")
    ACC = 64
    for i_n in range(2):
        for i_m in range(2):
            d = ACC + (2*i_n + i_m)*16
            o = 32 + (2*i_n + i_m)*8 if False else 128 + (2*i_n+i_m)*8
            for i in range(8): a(f"v_cvt_pk_bf16_f32 v{o+i}, v{d+2*i}, v{d+2*i+1}")
            for i in range(8): a(f"v_pk_max_i16 v{o+i}, v{o+i}, 0")
            for half in range(2):
                a(f"buffer_store_dwordx4 {vr(o+4*half,4)}, v{vL16}, s[{sWS}:{sWS+3}], s{sT[2+i_n]} offen offset:{half*2048 + i_m*1024} {opt.get('st1','')}")
    k1_fin()

    a("K1_QKV:")
    srd(a, sW, 6, 512 * 3072); srd(a, sP, 8, 32 * 512)
    a("v_lshrrev_b32 v4, 3, v0")
    a("v_bfe_u32 v5, v0, 4, 1"); a("v_lshlrev_b32 v5, 2, v5")
    a("v_and_b32 v6, 7, v0"); a("v_xor_b32 v5, v5, v6"); a("v_lshlrev_b32 v5, 4, v5")
    a("v_mul_u32_u24 v4, 3072, v4")
    a(f"v_add_u32 v{vWs}, v4, v5")
    a(f"s_lshl_b32 s{sWo[0]}, s{s_t}, 7"); a(f"s_mul_i32 s23, s{s_w}, {8*3072}"); a(f"s_add_u32 s{sWo[0]}, s{sWo[0]}, s23")
    for i in range(1, 3): a(f"s_add_u32 s{sWo[i]}, s{sWo[0]}, {i*1024}")
    s_mt, s_p = 59, 60
    a(f"s_and_b32 s{s_mt}, s{s_w}, 3"); a(f"s_lshr_b32 s{s_p}, s{s_w}, 2")
    a(f"s_lshl_b32 s23, s{s_mt}, 12")
    xa_setup(23)
    a(f"v_lshl_add_u32 v4, v{vhf}, 3, v{vr_}"); a("v_lshlrev_b32 v4, 7, v4"); a(f"v_add_u32 v4, v4, v{vlo}"); a(f"v_add_u32 v4, {WB}, v4")
    a(f"v_lshrrev_b32 v5, 1, v{vr_}"); a(f"v_xor_b32 v5, s{s_p}, v5")
    a("v_lshl_add_u32 v20, v5, 6, v4"); a("v_add_u32 v21, 49152, v20")
    a(f"s_lshl_b32 s{sT[1]}, s{s_t}, 2"); a(f"s_lshl_b32 s23, s{s_p}, 1"); a(f"s_add_u32 s{sT[1]}, s{sT[1]}, s23")
    a(f"s_lshl_b32 s{sT[0]}, s{sT[1]}, 9")
    vm, lg = gemm("Q")
    AQ, AK, AV = 64, 80, 96
    PK, VF = 32768, 0
    aphi_pack(a, 24, 144, 8, 4)
    for i in range(8): a(f"v_cvt_pk_bf16_f32 v{32+i}, v{AK+2*i}, v{AK+2*i+1}")
    a(f"v_mfma_f32_32x32x16_bf16 {vr(112,16)}, {vr(24,4)}, {vr(32,4)}, 0")
    a(f"v_mfma_f32_32x32x16_bf16 {vr(128,16)}, {vr(28,4)}, {vr(36,4)}, 0")
    for i in range(8): a(f"v_cvt_pk_bf16_f32 v{40+i}, v{AQ+2*i}, v{AQ+2*i+1}")
    a(f"s_lshr_b32 s23, s{s_rb}, 1"); a("s_lshl_b32 s23, s23, 5"); a(f"s_add_u32 s23, s23, s{sT[1]}"); a("s_lshl_b32 s23, s23, 3")
    a(f"s_and_b32 s22, s{s_rb}, 1"); a("s_lshl_b32 s22, s22, 2"); a("s_add_u32 s23, s23, s22"); a(f"s_add_u32 s23, s23, s{s_mt}")
    a("s_lshl_b32 s23, s23, 10"); a(f"s_add_u32 s{sT[2]}, s23, {WS_QF}"); a(f"s_add_u32 s{sT[3]}, s{sT[2]}, 8192")
    a(f"buffer_store_dwordx4 {vr(40,4)}, v{vL16}, s[{sWS}:{sWS+3}], s{sT[2]} offen {opt.get('st1','')}")
    a(f"buffer_store_dwordx4 {vr(44,4)}, v{vL16}, s[{sWS}:{sWS+3}], s{sT[3]} offen {opt.get('st1','')}")
    for i in range(8): a(f"v_cvt_pk_bf16_f32 v{48+i}, v{AV+2*i}, v{AV+2*i+1}")
    a(f"s_lshl_b32 s23, s{s_w}, 11")
    a(f"v_add_u32 v5, s23, v{vL16}")
    a(f"ds_write_b128 v5, {vr(48,4)} offset:{VF}")
    a(f"ds_write_b128 v5, {vr(52,4)} offset:{VF+1024}")
    a(f"v_bfe_u32 v4, v{vm_}, 1, 2"); a(f"v_lshlrev_b32 v6, 1, v{vhf}"); a("v_xor_b32 v4, v4, v6"); a("v_lshlrev_b32 v4, 4, v4")
    a(f"v_lshl_add_u32 v4, v{vm_}, 6, v4")
    a(f"s_lshl_b32 s23, s{s_p}, 14"); a(f"s_lshl_b32 s22, s{s_mt}, 11"); a("s_add_u32 s23, s23, s22"); a(f"s_add_u32 s23, s23, {PK}")
    a("v_add_u32 v13, s23, v4"); a("v_xor_b32 v14, 16, v13")
    for e in range(2):
        softmax16(a, 112 + 16*e, 6, sL, 144 + 8*e)
        a(f"ds_write_b128 v13, {vr(144+8*e,4)} offset:{e*8192}")
        a(f"ds_write_b128 v14, {vr(148+8*e,4)} offset:{e*8192}")
    a("s_waitcnt lgkmcnt(0)"); a("s_barrier")
    a(f"s_cmp_ge_u32 s{s_w}, 4"); a("s_cbranch_scc1 K1_FIN")
    a("v_and_b32 v4, 1, v0"); a("v_lshlrev_b32 v4, 1, v4"); a("v_bfe_u32 v5, v0, 4, 1"); a("v_add_u32 v4, v4, v5")
    a(f"v_lshrrev_b32 v6, 1, v{vr_}"); a(f"v_lshl_add_u32 v6, v{vhf}, 1, v6")
    a("v_xor_b32 v4, v4, v6"); a("v_lshlrev_b32 v4, 4, v4")
    a("v_bfe_u32 v6, v0, 1, 1"); a("v_lshl_add_u32 v4, v6, 3, v4")
    a(f"v_lshl_add_u32 v6, v{vhf}, 2, v{vr_}"); a("v_lshl_add_u32 v4, v6, 6, v4")
    a(f"s_lshl_b32 s23, s{s_w}, 13"); a(f"s_add_u32 s23, s23, {PK}"); a("v_add_u32 v13, s23, v4")
    a(f"s_lshr_b32 s23, s{s_w}, 1"); a("s_lshl_b32 s23, s23, 13"); a(f"v_add_u32 v14, s23, v{vL16}")
    a(f"s_and_b32 s22, s{s_w}, 1")
    a("v_cmp_ne_u32 s[62:63], s22, v5")
    a("v_mov_b32 v15, 0x3f803f80")
    lg = Cnt(a, "lgkmcnt", 15)
    def kvread(u):
        f = 32 + (u & 3)*8
        a(f"ds_read_b64_tr_b16 {vr(f,2)}, v13 offset:{u*1024}"); lg.issue(u)
        a(f"ds_read_b64_tr_b16 {vr(f+2,2)}, v13 offset:{u*1024+512}"); lg.issue(u)
        a(f"ds_read_b128 {vr(f+4,4)}, v14 offset:{VF + u*1024}"); lg.issue(u)
    for u in range(4): kvread(u)
    for u in range(8):
        f = 32 + (u & 3)*8
        lg.wait(u)
        for i in range(4): a(f"v_cndmask_b32 v{f+4+i}, v{f+4+i}, v15, s[62:63]")
        a(f"v_mfma_f32_32x32x16_bf16 {vr(64,16)}, {vr(f,4)}, {vr(f+4,4)}, {'0' if u == 0 else vr(64,16)}")
        if u + 4 < 8: kvread(u + 4)
    a("v_and_b32 v4, 15, v0"); a("v_lshlrev_b32 v4, 4, v4"); a(f"v_lshl_add_u32 v4, v{vhf}, 8, v4")
    a(f"v_lshlrev_b32 v6, 4, v{vhf}"); a("v_add_u32 v6, 512, v6")
    a("v_cndmask_b32 v4, v4, v6, s[62:63]")
    a(f"s_lshl_b32 s23, s{s_t}, 2"); a(f"s_add_u32 s23, s23, s{s_w}"); a(f"s_mul_i32 s23, s23, {KV_H}")
    a(f"s_mul_i32 s22, s{s_rb}, {KV_P}"); a("s_add_u32 s23, s23, s22"); a(f"s_add_u32 s23, s23, {WS_KV}")
    for q in range(4):
        a(f"buffer_store_dwordx4 {vr(64+4*q,4)}, v4, s[{sWS}:{sWS+3}], s23 offen offset:{q*544} {opt.get('st1','')}")
    a("K1_FIN:")
    k1_fin()

    a("K1_AUX:")
    srd(a, sP, 18, 1024)
    a("v_lshrrev_b32 v4, 3, v0"); a("v_and_b32 v5, 7, v0"); a("v_lshlrev_b32 v5, 4, v5")
    a("v_lshl_add_u32 v6, v4, 10, v5")
    a(f"s_lshl_b32 s23, s{s_rb}, 17"); a(f"s_lshl_b32 s22, s{s_w}, 14"); a("s_add_u32 s23, s23, s22"); a("s_add_u32 s22, s23, 8192")
    for c in range(8): a(f"buffer_load_dwordx4 {vr(16+4*c,4)}, v5, s[{sP}:{sP+3}], 0 offen offset:{c*128}")
    for c in range(8): a(f"buffer_load_dwordx4 {vr(48+4*c,4)}, v6, s[{sX}:{sX+3}], s23 offen offset:{c*128}")
    for c in range(8): a(f"buffer_load_dwordx4 {vr(80+4*c,4)}, v6, s[{sX}:{sX+3}], s22 offen offset:{c*128}")
    a("v_mov_b32 v112, 0"); a("v_mov_b32 v113, 0")
    a("s_waitcnt vmcnt(8)")
    for i in range(32): a(f"v_dot2c_f32_bf16 v112, v{48+i}, v{16+i}")
    a("s_waitcnt vmcnt(0)")
    for i in range(32): a(f"v_dot2c_f32_bf16 v113, v{80+i}, v{16+i}")
    a("s_nop 2")
    for r in (112, 113):
        a(f"v_add_f32 v{r}, v{r}, v{r} quad_perm:[1,0,3,2] row_mask:0xf bank_mask:0xf")
    for r in (112, 113):
        a(f"v_add_f32 v{r}, v{r}, v{r} quad_perm:[2,3,0,1] row_mask:0xf bank_mask:0xf")
    for r in (112, 113):
        a(f"v_add_f32 v{r}, v{r}, v{r} row_half_mirror row_mask:0xf bank_mask:0xf")
    for r in (112, 113):
        a(f"v_mul_f32 v{r}, s{sL}, v{r}")
        a(f"v_exp_f32 v{r}, -v{r}")
        a(f"v_add_f32 v{r}, 1.0, v{r}")
        a(f"v_rcp_f32 v{r}, v{r}")
    a("v_lshlrev_b32 v4, 2, v4")
    a(f"s_lshl_b32 s23, s{s_rb}, 9"); a(f"s_lshl_b32 s22, s{s_w}, 6"); a("s_add_u32 s23, s23, s22"); a(f"s_add_u32 s23, s23, {WS_G}")
    a(f"buffer_store_dword v112, v4, s[{sWS}:{sWS+3}], s23 offen")
    a(f"buffer_store_dword v113, v4, s[{sWS}:{sWS+3}], s23 offen offset:32")
    if ST: a("s_mov_b32 s66, s64"); a("s_mov_b32 s68, s64")
    k1_fin()
    a("K1_END:")
    a("s_endpgm")
    return descriptor(name, 160, 80), 147456

def gen_k2(a, opt):
    name = "k2_kernel"
    D = opt.get("D", 8)
    header(a, name)
    sW2, sWO, sWS, sP, sO, sDB = 28, 32, 36, 40, 44, 48
    s_w, s_mp, s_np, s_rg, s_h = 52, 53, 54, 55, 56
    sB, sA, sL, sLB, sC = 57, 58, 59, 60, 61
    ST = opt.get("stamp", 0)
    if ST: a("s_memrealtime s[64:65]")
    a("s_cmp_ge_u32 s2, 256"); a("s_cbranch_scc1 K2_END")
    a("s_load_dwordx16 s[4:19], s[0:1], 0")
    a("s_load_dwordx4 s[20:23], s[0:1], 64")
    a("s_load_dwordx2 s[24:25], s[0:1], 80")
    a("v_lshrrev_b32 v1, 6, v0"); a("v_and_b32 v0, 63, v0")
    a(f"v_readfirstlane_b32 s{s_w}, v1")
    a(f"s_and_b32 s{s_rg}, s2, 7"); a(f"s_lshr_b32 s{s_h}, s2, 3")
    if opt.get("map2", "A") == "A":
        a(f"s_lshl_b32 s{s_mp}, s{s_rg}, 2"); a(f"s_lshr_b32 s3, s{s_h}, 3"); a(f"s_add_u32 s{s_mp}, s{s_mp}, s3")
        a(f"s_and_b32 s{s_np}, s{s_h}, 7")
    else:
        a(f"s_lshr_b32 s3, s{s_rg}, 1"); a(f"s_lshl_b32 s{s_mp}, s3, 3"); a(f"s_lshr_b32 s3, s{s_h}, 2"); a(f"s_add_u32 s{s_mp}, s{s_mp}, s3")
        a(f"s_and_b32 s3, s{s_rg}, 1"); a("s_lshl_b32 s3, s3, 2"); a(f"s_and_b32 s{s_np}, s{s_h}, 3"); a(f"s_add_u32 s{s_np}, s{s_np}, s3")
    a(f"s_mov_b32 s{sL}, {LOG2E}")
    vm_, vhf, vr_, vlo, vL16 = 8, 9, 10, 11, 12
    a(f"v_and_b32 v{vm_}, 31, v0"); a(f"v_lshrrev_b32 v{vhf}, 5, v0"); a(f"v_bfe_u32 v{vr_}, v0, 2, 2")
    a("v_bfe_u32 v4, v0, 4, 1"); a("v_and_b32 v5, 3, v0"); a("v_lshlrev_b32 v5, 3, v5"); a(f"v_lshl_add_u32 v{vlo}, v4, 5, v5")
    a(f"v_lshlrev_b32 v{vL16}, 4, v0")
    a("v_and_b32 v5, 15, v0"); a("v_lshlrev_b32 v5, 4, v5"); a(f"v_lshl_add_u32 v5, v{vhf}, 8, v5")
    a(f"v_lshlrev_b32 v6, 4, v{vhf}"); a("v_add_u32 v6, 512, v6")
    a("v_cmp_eq_u32 vcc, 1, v4")
    a("v_cndmask_b32 v13, v5, v6, vcc")
    aphi_addr(a, 14, 0, 5, 6)
    a("v_lshrrev_b32 v5, 3, v0"); a("v_lshlrev_b32 v4, 2, v4"); a("v_and_b32 v6, 7, v0"); a("v_xor_b32 v4, v4, v6"); a("v_lshlrev_b32 v4, 4, v4")
    a("v_lshl_add_u32 v15, v5, 10, v4"); a("v_add_u32 v16, 7168, v15")
    a(f"s_and_b32 s3, s{s_w}, 1"); a("s_lshl_b32 s26, s3, 10")
    a(f"v_add_u32 v17, s26, v{vL16}"); a("v_xor_b32 v18, 1024, v17")
    a(f"s_lshl_b32 s{sLB}, s{s_w}, {11 + (D-1).bit_length()}")
    a(f"v_lshl_add_u32 v4, v{vhf}, 2, v{vr_}"); a("v_lshlrev_b32 v4, 7, v4"); a(f"v_add_u32 v4, v4, v{vlo}"); a(f"v_add_u32 v4, s{sLB}, v4")
    a(f"s_lshr_b32 s27, s{s_w}, 1")
    a(f"v_lshrrev_b32 v5, 1, v{vr_}"); a("v_xor_b32 v5, s27, v5")
    a("v_lshl_add_u32 v19, v5, 6, v4"); a("v_xor_b32 v20, 64, v19")
    a(f"v_lshlrev_b32 v21, 2, v{vm_}")
    a("v_mov_b32 v22, 0")
    RING = 4 * D * 2048
    KVZ = RING; CNTR = RING + 2048
    LDS = max(RING + 2048 + 64, 49152)
    a(f"v_mov_b32 v23, {CNTR}")
    a("ds_write_b32 v23, v22")
    a("s_waitcnt lgkmcnt(0)")
    srd(a, sW2, 16, 1792 * 1024); srd(a, sWO, 10, 512 * 1024); srd(a, sWS, 24, WS_SIZE); srd(a, sP, 8, 32 * 512)
    srd(a, sO, 20, 2048 * 1024); srd(a, sDB, 22, 256)
    vm = Cnt(a, "vmcnt", 63); lg = Cnt(a, "lgkmcnt", 15)
    ACC, BR, WF = 64, 128, 128 + 8*D
    TMP = WF + 16
    a(f"s_mul_i32 s26, s{s_h}, {KV_H}"); a(f"s_mul_i32 s3, s{s_w}, 544"); a("s_add_u32 s26, s26, s3"); a(f"s_add_u32 s26, s26, {WS_KV}")
    a(f"s_lshl_b32 s3, s{s_rg}, 5"); a(f"s_add_u32 s3, s3, s{s_h}"); a("s_lshl_b32 s3, s3, 13"); a(f"s_lshl_b32 s27, s{s_w}, 11"); a("s_add_u32 s3, s3, s27"); a(f"s_add_u32 s3, s3, {WS_QF}")
    QF = 24
    for u in range(2):
        a(f"buffer_load_dwordx4 {vr(QF+4*u,4)}, v{vL16}, s[{sWS}:{sWS+3}], s3 offen offset:{u*1024}"); vm.issue("q")
    PH = 32
    a(f"s_lshl_b32 s3, s{s_h}, 9")
    aphi_load(a, vm, 48, 14, sP, "s3", "q")
    for rb in range(16):
        a(f"buffer_load_dwordx4 {vr(ACC+4*rb,4)}, v13, s[{sWS}:{sWS+3}], s26 offen"); vm.issue(("p", rb // 4))
        if rb < 15: a(f"s_add_u32 s26, s26, {KV_P}")
    a(f"s_lshl_b32 s3, s{s_rg}, 10"); a(f"s_lshl_b32 s27, s{s_w}, 8"); a("s_add_u32 s3, s3, s27"); a(f"s_add_u32 s3, s3, {WS_G}")
    a(f"buffer_load_dword v36, v21, s[{sWS}:{sWS+3}], s3 offen"); vm.issue("g")
    a(f"buffer_load_dword v37, v21, s[{sWS}:{sWS+3}], s3 offen offset:128"); vm.issue("g")
    a(f"s_lshl_b32 s3, s{s_mp}, 8"); a(f"s_add_u32 s3, s3, {WS_G}"); a(f"s_and_b32 s27, s{s_w}, 1"); a("s_lshl_b32 s27, s27, 7")
    a("s_add_u32 s26, s3, s27"); a("s_xor_b32 s27, s27, 128"); a("s_add_u32 s27, s3, s27")
    a(f"buffer_load_dword v38, v21, s[{sWS}:{sWS+3}], s26 offen"); vm.issue("g")
    a(f"buffer_load_dword v39, v21, s[{sWS}:{sWS+3}], s27 offen"); vm.issue("g")
    a(f"s_mul_i32 s{sB}, s{s_mp}, {AF_MP}"); a(f"s_mul_i32 s3, s{s_w}, {28*2048}"); a(f"s_add_u32 s{sB}, s{sB}, s3")
    a(f"s_lshl_b32 s{sA}, s{s_np}, 7"); a(f"s_mul_i32 s3, s{s_w}, {28*16384}"); a(f"s_add_u32 s{sA}, s{sA}, s3")
    NS = 36
    def loads(i):
        slot = i % D
        if i == 28:
            a(f"s_mul_i32 s{sB}, s{s_mp}, {AF_MP}"); a(f"s_lshl_b32 s3, s{s_w}, 14"); a(f"s_add_u32 s{sB}, s{sB}, s3"); a(f"s_add_u32 s{sB}, s{sB}, {112*2048}")
            a(f"s_lshl_b32 s{sA}, s{s_np}, 7"); a(f"s_lshl_b32 s3, s{s_w}, 17"); a(f"s_add_u32 s{sA}, s{sA}, s3")
        sw = sW2 if i < 28 else sWO
        fl = "" if i < 28 else "sc1"
        a(f"s_add_u32 m0, s{sLB}, {slot*2048}")
        a(f"buffer_load_dwordx4 {vr(BR+8*slot,4)}, v17, s[{sWS}:{sWS+3}], s{sB} offen {fl}"); vm.issue(("l", i))
        a(f"buffer_load_dwordx4 v15, s[{sw}:{sw+3}], s{sA} offen lds"); vm.issue(("l", i))
        a(f"buffer_load_dwordx4 {vr(BR+8*slot+4,4)}, v18, s[{sWS}:{sWS+3}], s{sB} offen {fl}"); vm.issue(("l", i))
        a(f"buffer_load_dwordx4 v16, s[{sw}:{sw+3}], s{sA} offen offset:1024 lds"); vm.issue(("l", i))
        a(f"s_add_u32 s{sB}, s{sB}, 2048"); a(f"s_add_u32 s{sA}, s{sA}, 16384")
    for i in range(D): loads(i)
    vm.wait("q")
    aphi_pack(a, PH, 48, 4, 4)
    PQ = [TMP, TMP + 16]
    for u in range(2):
        a(f"v_mfma_f32_32x32x16_bf16 {vr(PQ[u],16)}, {vr(PH,4)}, {vr(QF+4*u,4)}, 0")
    for grp in range(4):
        vm.wait(("p", grp))
        for rb in range(4*grp, 4*grp + 4):
            if rb == 0: continue
            for i in range(4): a(f"v_add_f32 v{ACC+i}, v{ACC+i}, v{ACC+4*rb+i}")
    a(f"v_cvt_pk_bf16_f32 v40, v{ACC}, v{ACC+1}"); a(f"v_cvt_pk_bf16_f32 v41, v{ACC+2}, v{ACC+3}")
    a(f"s_lshr_b32 s3, s{s_w}, 1"); a("s_lshl_b32 s3, s3, 10"); a(f"s_and_b32 s27, s{s_w}, 1"); a("s_lshl_b32 s27, s27, 3"); a("s_add_u32 s3, s3, s27"); a(f"s_add_u32 s3, s3, {KVZ}")
    a(f"v_add_u32 v5, s3, v{vL16}")
    a("ds_write_b64 v5, v[40:41]")
    PHQ = [48, 56]
    for u in range(2): softmax16(a, PQ[u], 6, sL, PHQ[u])
    a("s_waitcnt lgkmcnt(0)"); a("s_barrier")
    a(f"v_add_u32 v5, {KVZ}, v{vL16}")
    a(f"ds_read_b128 {vr(40,4)}, v5"); a(f"ds_read_b128 {vr(44,4)}, v5 offset:1024")
    a("s_waitcnt lgkmcnt(0)")
    for u in range(2):
        a(f"v_mfma_f32_32x32x16_bf16 {vr(PQ[u],16)}, {vr(40,4)}, {vr(PHQ[u],4)}, 0")
        a(f"v_mfma_f32_32x32x16_bf16 {vr(PQ[u],16)}, {vr(44,4)}, {vr(PHQ[u]+4,4)}, {vr(PQ[u],16)}")
    vm.wait("g")
    a(f"s_lshl_b32 s3, s{s_rg}, 2"); a(f"s_add_u32 s3, s3, s{s_w}"); a(f"s_mul_i32 s3, s3, {AF_MP}"); a(f"s_lshl_b32 s27, s{s_h}, 11"); a("s_add_u32 s3, s3, s27"); a(f"s_add_u32 s3, s3, {112*2048}")
    a("v_sub_f32 v38, 1.0, v38"); a("v_sub_f32 v39, 1.0, v39")
    for u in range(2):
        P = PQ[u]
        a(f"v_add_f32 v6, 0x358637bd, v{P+8}")
        a("v_rcp_f32 v6, v6")
        a(f"v_mul_f32 v6, v6, v{36+u}")
        for i in range(8): a(f"v_mul_f32 v{P+i}, v{P+i}, v6")
        for i in range(4): a(f"v_cvt_pk_bf16_f32 v{QF+4*u+i}, v{P+2*i}, v{P+2*i+1}")
        a(f"buffer_store_dwordx4 {vr(QF+4*u,4)}, v{vL16}, s[{sWS}:{sWS+3}], s3 offen offset:{u*1024} sc1"); vm.issue("ost")
    a(f"s_lshl_b32 s{sC}, s{s_rg}, 5")
    a(f"s_lshr_b32 s62, s{s_mp}, 2"); a("s_lshl_b32 s62, s62, 5")
    def reads(i):
        slot = i % D; f = WF + (i & 1)*8
        for t in range(2):
            for sec in range(2):
                a(f"ds_read_b64_tr_b16 {vr(f+4*t+2*sec,2)}, v{19+t} offset:{slot*2048 + sec*1024}"); lg.issue(("f", i))
    def mfmas(i):
        slot = i % D; f = WF + (i & 1)*8
        for t in range(2):
            for im in range(2):
                d = ACC + (2*t + im)*16
                a(f"v_mfma_f32_32x32x16_bf16 {vr(d,16)}, {vr(f+4*t,4)}, {vr(BR+8*slot+4*im,4)}, {'0' if i == 0 else vr(d,16)}")
    SIG = opt.get("sig", 3); POLL = opt.get("poll", 28 - D - 4)
    if ST: a("s_memrealtime s[66:67]"); a("s_waitcnt lgkmcnt(0)")
    vm.wait(("l", 0)); reads(0)
    for i in range(NS):
        if i + 1 < NS:
            vm.wait(("l", i+1)); reads(i+1)
        lg.wait(("f", i))
        if i == 28:
            for t in range(4):
                for r in range(16): a(f"v_mul_f32 v{ACC+16*t+r}, v{ACC+16*t+r}, v{38 + (t & 1)}")
        mfmas(i)
        if i == SIG:
            vm.wait("ost")
            a("v_mov_b32 v4, 1")
            a("s_mov_b64 exec, 1")
            a("ds_add_rtn_u32 v5, v23, v4"); lg.issue("cnt")
            lg.wait("cnt")
            a("v_cmp_eq_u32 vcc, 3, v5")
            a("s_cbranch_vccz K2_NOSIG")
            a(f"buffer_atomic_add v4, v22, s[{sDB}:{sDB+3}], s{sC} offen sc1")
            a("s_branch K2_SIGD")
            a("K2_NOSIG:")
            a(f"buffer_load_dword v5, v22, s[{sDB}:{sDB+3}], s{sC} offen sc1")
            a("K2_SIGD:")
            vm.issue("sig")
            a("s_mov_b64 exec, -1")
        if i == POLL:
            a(f"buffer_load_dword v7, v22, s[{sDB}:{sDB+3}], s62 offen sc1"); vm.issue("poll")
        if i + D == 28:
            vm.wait("poll")
            a("v_readfirstlane_b32 s3, v7")
            a("s_mov_b32 s63, 0")
            a("K2_SPIN:")
            a("s_cmp_ge_u32 s3, 32"); a("s_cbranch_scc1 K2_GO")
            a("s_add_u32 s63, s63, 1"); a("s_cmp_ge_u32 s63, 0x40000"); a("s_cbranch_scc1 K2_GO")
            a("s_sleep 2")
            a(f"buffer_load_dword v7, v22, s[{sDB}:{sDB+3}], s62 offen sc1")
            a("s_waitcnt vmcnt(0)")
            a("v_readfirstlane_b32 s3, v7")
            a("s_branch K2_SPIN")
            a("K2_GO:")
        if i + D < NS: loads(i + D)
    if ST: a("s_memrealtime s[68:69]")
    a("s_barrier")
    for t in range(1, 4):
        a(f"s_xor_b32 s3, s{s_w}, {t}"); a("s_mul_i32 s3, s3, 12288")
        a(f"v_add_u32 v4, s3, v{vL16}")
        for q in range(4): a(f"ds_write_b128 v4, {vr(ACC+16*t+4*q,4)} offset:{(t-1)*4096 + q*1024}")
    a(f"s_mul_i32 s3, s{s_w}, 12288"); a(f"v_add_u32 v5, s3, v{vL16}")
    a(f"v_lshlrev_b32 v6, 10, v{vm_}"); a(f"v_lshl_add_u32 v6, v{vhf}, 4, v6")
    a(f"s_lshl_b32 s3, s{s_mp}, 16"); a(f"s_and_b32 s27, s{s_w}, 1"); a("s_lshl_b32 s27, s27, 15"); a("s_add_u32 s3, s3, s27")
    a(f"s_lshl_b32 s27, s{s_np}, 7"); a("s_add_u32 s3, s3, s27"); a(f"s_lshr_b32 s27, s{s_w}, 1"); a("s_lshl_b32 s27, s27, 6"); a("s_add_u32 s3, s3, s27")
    a("s_waitcnt lgkmcnt(0)"); a("s_barrier")
    lg.drain()
    for t in range(3):
        for q in range(4):
            a(f"ds_read_b128 {vr(BR+16*t+4*q,4)}, v5 offset:{t*4096 + q*1024}"); lg.issue(t)
    for t in range(3):
        lg.wait(t)
        for r in range(16): a(f"v_add_f32 v{ACC+r}, v{ACC+r}, v{BR+16*t+r}")
    for i in range(8): a(f"v_cvt_pk_bf16_f32 v{24+i}, v{ACC+2*i}, v{ACC+2*i+1}")
    a("v_permlane32_swap_b32 v24, v26"); a("v_permlane32_swap_b32 v25, v27")
    a("v_permlane32_swap_b32 v28, v30"); a("v_permlane32_swap_b32 v29, v31")
    a(f"buffer_store_dwordx4 {vr(24,4)}, v6, s[{sO}:{sO+3}], s3 offen")
    a(f"buffer_store_dwordx4 {vr(28,4)}, v6, s[{sO}:{sO+3}], s3 offen offset:32")
    if ST:
        a("s_waitcnt vmcnt(0)"); a("s_memrealtime s[70:71]"); a("s_waitcnt lgkmcnt(0)")
        a(f"s_lshl_b32 s3, s2, 3"); a(f"s_add_u32 s3, s3, s{s_w}"); a("s_lshl_b32 s3, s3, 4"); a(f"s_add_u32 s3, s3, {WS_ST + 32768}")
        a("v_mov_b32 v4, s64"); a("v_mov_b32 v5, s66"); a("v_mov_b32 v6, s68"); a("v_mov_b32 v7, s70"); a("v_mov_b32 v1, 0")
        a(f"buffer_store_dwordx4 v[4:7], v1, s[{sWS}:{sWS+3}], s3 offen")
        a(f"s_lshl_b32 s3, s2, 7"); a(f"s_lshl_b32 s27, s{s_w}, 5"); a("s_add_u32 s3, s3, s27"); a(f"s_add_u32 s3, s3, {WS_ST}")
        a("s_mov_b64 exec, 3")
        a(f"buffer_load_dwordx4 v[24:27], v{vL16}, s[{sWS}:{sWS+3}], s3 offen")
        a("s_waitcnt vmcnt(0)")
        a("v_not_b32 v28, v24"); a("v_not_b32 v29, v4"); a("v_not_b32 v30, v27"); a("v_not_b32 v31, v7")
        for idx, r in [(1, 28), (2, 24), (3, 25), (4, 26), (5, 27), (6, 30), (9, 29), (10, 4), (11, 5), (12, 6), (13, 7), (14, 31)]:
            a(f"buffer_atomic_umax v{r}, v1, s[{sDB}:{sDB+3}], 0 offen offset:{idx*4} sc1")
    a("K2_END:")
    a("s_endpgm")
    return descriptor(name, TMP + 32, 80), LDS

def generate(opt=None):
    opt = opt or {}
    a = Asm()
    a(".text")
    d1, lds1 = gen_k1(a, opt)
    d2, lds2 = gen_k2(a, opt)
    body = a.finalize()
    head = open("cdna_kernels/" + NAME + ".s.ref").read().split("; Override launch")[0]
    head += f"; @launch kernel=k1_kernel grid=(256,1,1) block=(512,1,1) lds={lds1}\n"
    head += f"; @launch kernel=k2_kernel grid=(256,1,1) block=(256,1,1) lds={lds2}\n"
    head += '.amdgcn_target "amdgcn-amd-amdhsa--gfx950"\n'
    return head + body + '.section .rodata,"a"\n' + d1 + d2

if __name__ == "__main__":
    out = sys.argv[1] if len(sys.argv) > 1 else "cdna_kernels/" + NAME + ".s"
    opt = {}
    for kv in sys.argv[2:]:
        k, v = kv.split("=", 1)
        opt[k] = int(v) if v.lstrip("-").isdigit() else v
    open(out, "w").write(generate(opt))
    print("wrote", out)
```
